```python
import torch

def _softmax(x, axis=-1):
    return torch.softmax(x, dim=axis)

def _gelu(x):
    return torch.nn.functional.gelu(x, approximate='tanh')

def _silu(x):
    return torch.nn.functional.silu(x)

def _sigmoid(x):
    return torch.sigmoid(x)

def _layernorm(x, axis=-1, eps=1e-05):
    m = x.mean(dim=axis, keepdim=True)
    v = x.var(dim=axis, keepdim=True, unbiased=False)
    return (x - m) / torch.sqrt(v + eps)

def _scatter_add(tgt, idx, src, axis=0):
    return tgt.clone().index_add_(axis, idx, src)

def _segment_sum(src, seg, n):
    out = torch.zeros((n,) + src.shape[1:], dtype=src.dtype)
    return out.index_add_(0, seg, src)

def _pad(x, pw):
    flat = tuple((v for pair in reversed(pw) for v in pair))
    return torch.nn.functional.pad(x, flat)
kernel_name = 'standalone__tree_speculative_verify_tree_attention_over_candidate_token_tree__sampling'

def setup_inputs():

    _w = lambda a: (lambda t: t.to(torch.bfloat16) if t.is_floating_point() else t)(torch.as_tensor(a))
    B, Hq, Hkv, T, C, D = (8, 32, 16, 1, 8192, 128)
    tree_mask = torch.zeros((B, T, T), dtype=float)
    for b in range(B):
        parent = torch.zeros(T, dtype=torch.int64)
        for i in range(1, T):
            parent[i] = int(torch.randint(0, i, (1,)).item())
        for i in range(T):
            j = i
            tree_mask[b, i, j] = 1.0
            while j > 0:
                j = parent[j]
                tree_mask[b, i, j] = 1.0
    return {'q': _w((lambda *s: torch.randn(*s, dtype=torch.bfloat16) * 0.8)(B, Hq, T, D)), 'k_cache': _w((lambda *s: torch.randn(*s, dtype=torch.bfloat16) * 0.8)(B, Hkv, C, D)), 'v_cache': _w((lambda *s: torch.randn(*s, dtype=torch.bfloat16) * 0.05)(B, Hkv, C, D)), 'k_tree': _w((lambda *s: torch.randn(*s, dtype=torch.bfloat16) * 0.8)(B, Hkv, T, D)), 'v_tree': _w((lambda *s: torch.randn(*s, dtype=torch.bfloat16) * 0.05)(B, Hkv, T, D)), 'tree_mask': _w(tree_mask)}

def reference(q, k_cache, v_cache, k_tree, v_tree, tree_mask):
    B, Hq, T, D = q.shape
    Hkv, C = (k_cache.shape[1], k_cache.shape[2])
    rep = Hq // Hkv
    kc = (lambda x, n, axis: torch.repeat_interleave(x, n, dim=axis))(k_cache, rep, axis=1)
    vc = (lambda x, n, axis: torch.repeat_interleave(x, n, dim=axis))(v_cache, rep, axis=1)
    kt = (lambda x, n, axis: torch.repeat_interleave(x, n, dim=axis))(k_tree, rep, axis=1)
    vt = (lambda x, n, axis: torch.repeat_interleave(x, n, dim=axis))(v_tree, rep, axis=1)
    k = torch.concatenate([kc, kt], axis=2)
    v = torch.concatenate([vc, vt], axis=2)
    scale = D ** (-0.5)
    scores = torch.einsum('bhqd,bhkd->bhqk', q, k) * scale
    ctx_mask = torch.ones((B, 1, T, C), dtype=scores.dtype)
    tm = tree_mask[:, None, :, :].clone()
    full_mask = torch.concatenate([ctx_mask, tm], axis=-1)
    scores = scores + (1.0 - full_mask) * -1000000000.0
    p = _softmax(scores, axis=-1)
    return torch.einsum('bhqk,bhkd->bhqd', p, v)
```

```python
import sys, argparse

NAME = "standalone__tree_speculative_verify_tree_attention_over_candidate_token_tree__sampling"

HEADER = """; Kernarg layout for this problem (72 bytes, ptrs only, base s[0:1]):
"""

class Gen:
    def __init__(self):
        self.lines = []
    def e(self, s):
        self.lines.append("    " + s)
    def label(self, s):
        self.lines.append(s + ":")
    def c(self, s):
        self.lines.append("    ; " + s)
    def text(self):
        return "\n".join(self.lines) + "\n"

def vr(base, n=1):
    if n == 1:
        return "v%d" % base
    return "v[%d:%d]" % (base, base + n - 1)
def sr(base, n=1):
    if n == 1:
        return "s%d" % base
    return "s[%d:%d]" % (base, base + n - 1)

def gen(NW=8, NSPLIT=2, DEPTH=2, KFLAGS="", VFLAGS="", SKIPBR=True, MAP="pairmajor"):
    g = Gen()
    NPAIR = 128
    NWG = NPAIR * NSPLIT
    CHUNK = 8192 * 256 // NSPLIT
    NT = 8192 // NSPLIT // 32 // NW
    assert NT >= DEPTH and (NT % DEPTH) == 0
    TSTRIDE = NW * 8192
    v_tid = 0
    v_koff = 1
    v_voff = 2
    v_lane = 3
    v_m = 4
    v_l = 5
    v_t0 = 6
    v_t1 = 7
    v_al = 8
    v_mn = 9
    v_t2 = 10
    v_t3 = 11
    Q = 12
    S = Q + 16
    P = S + 8
    T = P + 4
    O = T + 12
    KB = O + 32
    VB = KB + 32 * DEPTH
    VEND = VB + 32 * DEPTH
    nvgpr = VEND
    s_wg = 2
    s_pair = 3
    s_split = 4
    s_wave = 5
    s_c = 6
    s_sello = 7
    SK = 8
    SV = 12
    SX = 16
    s_ko = 20
    s_ko2 = 21
    s_cnt = 22
    s_selhi = 23
    s_ptr = 24
    s_tmp = 44
    s_tmp2 = 45
    s_ex = 46

    kq, kk, kv, kkt, kvt, kmask, kout, kdbg, kws = [s_ptr + 2 * i for i in range(9)]

    g.e("s_cmp_ge_u32 s2, %d" % NWG)
    g.e("s_cbranch_scc1 L_end")
    g.e("s_load_dwordx16 s[24:39], s[0:1], 0")
    g.e("s_load_dwordx2 s[40:41], s[0:1], 64")
    if MAP == "pairmajor":
        g.e("s_lshr_b32 s%d, s2, %d" % (s_pair, NSPLIT.bit_length() - 1))
        g.e("s_and_b32 s%d, s2, %d" % (s_split, NSPLIT - 1))
    else:
        g.e("s_and_b32 s%d, s2, 127" % s_pair)
        g.e("s_lshr_b32 s%d, s2, 7" % s_split)
    g.e("v_lshrrev_b32 v%d, 6, v0" % v_t0)
    g.e("v_and_b32 v%d, 63, v0" % v_lane)
    g.e("v_readfirstlane_b32 s%d, v%d" % (s_wave, v_t0))
    g.e("v_and_b32 v%d, 3, v%d" % (v_t0, v_lane))
    g.e("v_lshlrev_b32 v%d, 10, v%d" % (v_t0, v_t0))
    g.e("v_bfe_u32 v%d, v%d, 2, 2" % (v_t1, v_lane))
    g.e("v_lshl_add_u32 v%d, v%d, 8, v%d" % (v_t0, v_t1, v_t0))
    g.e("v_lshrrev_b32 v%d, 4, v%d" % (v_t2, v_lane))
    g.e("v_lshl_add_u32 v%d, v%d, 4, v%d" % (v_koff, v_t2, v_t0))
    g.e("v_lshlrev_b32 v%d, 4, v%d" % (v_voff, v_lane))
    g.e("v_and_b32 v%d, 1, v%d" % (v_t1, v_lane))
    g.e("v_lshlrev_b32 v%d, 8, v%d" % (v_t1, v_t1))
    g.e("v_lshl_add_u32 v%d, v%d, 4, v%d" % (v_t3, v_t2, v_t1))
    g.e("s_mov_b32 s%d, 0x3e0293ee" % s_c)
    g.e("s_mov_b32 s%d, 0x05040100" % s_sello)
    g.e("s_mov_b32 s%d, 0x07060302" % s_selhi)
    g.e("s_lshl_b32 s%d, s%d, 21" % (s_tmp, s_pair))
    g.e("s_mul_i32 s%d, s%d, %d" % (s_tmp2, s_split, CHUNK))
    g.e("s_add_u32 s%d, s%d, s%d" % (s_tmp, s_tmp, s_tmp2))
    g.e("s_lshl_b32 s%d, s%d, 13" % (s_ko, s_wave))
    g.e("s_add_u32 s%d, s%d, 4096" % (s_ko2, s_ko))
    g.e("s_waitcnt lgkmcnt(0)")
    g.e("s_lshl_b32 s%d, s%d, 9" % (s_tmp2, s_pair))
    g.e("s_add_u32 s%d, s%d, s%d" % (SX, kq, s_tmp2))
    g.e("s_addc_u32 s%d, s%d, 0" % (SX + 1, kq + 1))
    g.e("s_mov_b32 s%d, 512" % (SX + 2))
    g.e("s_mov_b32 s%d, 0x00020000" % (SX + 3))
    for j in range(4):
        g.e("buffer_load_dwordx4 %s, v%d, s[%d:%d], 0 offen offset:%d" % (vr(Q + 4 * j, 4), v_t3, SX, SX + 3, 64 * j))
    g.e("s_add_u32 s%d, s%d, s%d" % (SK, kk, s_tmp))
    g.e("s_addc_u32 s%d, s%d, 0" % (SK + 1, kk + 1))
    g.e("s_mov_b32 s%d, %d" % (SK + 2, CHUNK))
    g.e("s_mov_b32 s%d, 0x00020000" % (SK + 3))
    g.e("s_add_u32 s%d, s%d, s%d" % (SV, kv, s_tmp))
    g.e("s_addc_u32 s%d, s%d, 0" % (SV + 1, kv + 1))
    g.e("s_mov_b32 s%d, %d" % (SV + 2, CHUNK))
    g.e("s_mov_b32 s%d, 0x00020000" % (SV + 3))

    def loadK(b):
        for t in range(2):
            for j in range(4):
                g.e("buffer_load_dwordx4 %s, v%d, s[%d:%d], s%d offen offset:%d %s" % (
                    vr(KB + 32 * b + 16 * t + 4 * j, 4), v_koff, SK, SK + 3, (s_ko, s_ko2)[t], 64 * j, KFLAGS))
    def loadV(b):
        for x in range(8):
            g.e("buffer_load_dwordx4 %s, v%d, s[%d:%d], s%d offen offset:%d %s" % (
                vr(VB + 32 * b + 4 * x, 4), v_voff, SV, SV + 3, (s_ko, s_ko2)[x >> 2], 1024 * (x & 3), VFLAGS))
    def advance():
        g.e("s_add_u32 s%d, s%d, %d" % (s_ko, s_ko, TSTRIDE))
        g.e("s_add_u32 s%d, s%d, %d" % (s_ko2, s_ko2, TSTRIDE))

    g.e("s_or_b32 s%d, s%d, s%d" % (s_tmp2, s_wave, s_split))
    g.e("s_cmp_eq_u32 s%d, 0" % s_tmp2)
    g.e("s_cbranch_scc1 L_tree")
    for b in range(DEPTH):
        loadK(b); loadV(b); advance()
    g.e("v_mov_b32 v%d, 0xff7fffff" % v_m)
    g.e("v_mov_b32 v%d, 0" % v_l)
    for i in range(32):
        g.e("v_mov_b32 v%d, 0" % (O + i))
    g.e("s_branch L_loop_entry")
    g.label("L_tree")
    g.e("s_lshl_b32 s%d, s%d, 8" % (s_tmp2, s_pair))
    g.e("s_add_u32 s%d, s%d, s%d" % (SX, kkt, s_tmp2))
    g.e("s_addc_u32 s%d, s%d, 0" % (SX + 1, kkt + 1))
    g.e("s_mov_b32 s%d, 256" % (SX + 2))
    g.e("v_lshrrev_b32 v%d, 4, v%d" % (v_t2, v_lane))
    g.e("v_lshlrev_b32 v%d, 4, v%d" % (v_t0, v_t2))
    for j in range(4):
        g.e("buffer_load_dwordx4 %s, v%d, s[%d:%d], 0 offen offset:%d" % (vr(O + 4 * j, 4), v_t0, SX, SX + 3, 64 * j))
    g.e("s_add_u32 s%d, s%d, s%d" % (SX, kvt, s_tmp2))
    g.e("s_addc_u32 s%d, s%d, 0" % (SX + 1, kvt + 1))
    g.e("v_lshlrev_b32 v%d, 6, v%d" % (v_t0, v_t2))
    for r in range(4):
        g.e("buffer_load_dwordx4 %s, v%d, s[%d:%d], 0 offen offset:%d" % (vr(O + 16 + 4 * r, 4), v_t0, SX, SX + 3, 16 * r))
    g.e("s_lshr_b32 s%d, s%d, 4" % (s_tmp2, s_pair))
    g.e("s_lshl_b32 s%d, s%d, 1" % (s_tmp2, s_tmp2))
    g.e("s_mov_b32 s%d, s%d" % (SX, kmask))
    g.e("s_mov_b32 s%d, s%d" % (SX + 1, kmask + 1))
    g.e("s_mov_b32 s%d, 16" % (SX + 2))
    g.e("v_mov_b32 v%d, s%d" % (v_t0, s_tmp2))
    g.e("buffer_load_ushort v%d, v%d, s[%d:%d], 0 offen" % (v_t1, v_t0, SX, SX + 3))
    for b in range(DEPTH):
        loadK(b); loadV(b); advance()
    g.e("s_waitcnt vmcnt(%d)" % (16 * DEPTH))
    g.e("v_mfma_f32_16x16x32_bf16 %s, %s, %s, 0" % (vr(S, 4), vr(O, 4), vr(Q, 4)))
    for j in range(1, 4):
        g.e("v_mfma_f32_16x16x32_bf16 %s, %s, %s, %s" % (vr(S, 4), vr(O + 4 * j, 4), vr(Q + 4 * j, 4), vr(S, 4)))
    g.e("v_lshlrev_b32 v%d, 16, v%d" % (v_t1, v_t1))
    g.e("v_sub_f32 v%d, 1.0, v%d" % (v_t1, v_t1))
    g.e("v_mul_f32 v%d, 0xceabfb8f, v%d" % (v_t1, v_t1))
    tmpv = S + 4
    for i in range(16):
        g.e("v_mov_b32 v%d, v%d" % (tmpv + i, O + 16 + i))
    g.e("s_nop 4")
    g.e("v_fma_f32 v%d, v%d, s%d, v%d" % (v_m, S, s_c, v_t1))
    for i in range(8):
        for r in range(4):
            src = tmpv + 4 * r + (i >> 1)
            if i & 1:
                g.e("v_and_b32 v%d, 0xffff0000, v%d" % (O + 4 * i + r, src))
            else:
                g.e("v_lshlrev_b32 v%d, 16, v%d" % (O + 4 * i + r, src))
    g.e("v_cmp_gt_u32 vcc, 16, v%d" % v_lane)
    g.e("s_nop 1")
    g.e("v_cndmask_b32 v%d, 0, 1.0, vcc" % v_l)
    g.label("L_loop_entry")

    def body(b, pref, wk, wv, tag):
        g.e("s_waitcnt vmcnt(%d)" % wk)
        for j in range(4):
            for t in range(2):
                c = "0" if j == 0 else vr(S + 4 * t, 4)
                g.e("v_mfma_f32_16x16x32_bf16 %s, %s, %s, %s" % (vr(S + 4 * t, 4), vr(KB + 32 * b + 16 * t + 4 * j, 4), vr(Q + 4 * j, 4), c))
        if pref:
            loadK(b)
        else:
            g.e("s_nop 7")
        g.e("v_max3_f32 v%d, v%d, v%d, v%d" % (v_t0, S, S + 1, S + 2))
        g.e("v_max3_f32 v%d, v%d, v%d, v%d" % (v_t1, S + 3, S + 4, S + 5))
        g.e("v_max3_f32 v%d, v%d, v%d, v%d" % (v_t0, v_t0, S + 6, S + 7))
        g.e("v_max_f32 v%d, v%d, v%d" % (v_t0, v_t0, v_t1))
        g.e("v_mov_b32 v%d, v%d" % (v_t1, v_t0))
        g.e("s_nop 1")
        g.e("v_permlane32_swap_b32 v%d, v%d" % (v_t0, v_t1))
        g.e("v_max_f32 v%d, v%d, v%d" % (v_t0, v_t0, v_t1))
        g.e("v_mov_b32 v%d, v%d" % (v_t1, v_t0))
        g.e("s_nop 1")
        g.e("v_permlane16_swap_b32 v%d, v%d" % (v_t0, v_t1))
        g.e("v_max_f32 v%d, v%d, v%d" % (v_t0, v_t0, v_t1))
        g.e("v_mul_f32 v%d, s%d, v%d" % (v_t0, s_c, v_t0))
        if SKIPBR:
            g.e("v_cmp_gt_f32 vcc, v%d, v%d" % (v_t0, v_m))
            g.e("s_cbranch_vccz L_skip_%s" % tag)
        g.e("v_max_f32 v%d, v%d, v%d" % (v_mn, v_m, v_t0))
        g.e("v_sub_f32 v%d, v%d, v%d" % (v_t1, v_m, v_mn))
        g.e("v_exp_f32 v%d, v%d" % (v_al, v_t1))
        g.e("v_mov_b32 v%d, v%d" % (v_m, v_mn))
        g.e("v_mul_f32 v%d, v%d, v%d" % (v_l, v_l, v_al))
        for i in range(32):
            g.e("v_mul_f32 v%d, v%d, v%d" % (O + i, O + i, v_al))
        if SKIPBR:
            g.label("L_skip_%s" % tag)
        for i in range(8):
            g.e("v_fma_f32 v%d, v%d, s%d, -v%d" % (S + i, S + i, s_c, v_m))
        for i in range(8):
            g.e("v_exp_f32 v%d, v%d" % (S + i, S + i))
        g.e("s_nop 0")
        for y in range(4):
            g.e("v_cvt_pk_bf16_f32 v%d, v%d, v%d" % (P + y, S + 2 * y, S + 2 * y + 1))
        g.e("v_add_f32 v%d, v%d, v%d" % (v_t0, S, S + 1))
        g.e("v_add_f32 v%d, v%d, v%d" % (v_t1, S + 2, S + 3))
        g.e("v_add_f32 v%d, v%d, v%d" % (v_t2, S + 4, S + 5))
        g.e("v_add_f32 v%d, v%d, v%d" % (v_t3, S + 6, S + 7))
        g.e("v_add_f32 v%d, v%d, v%d" % (v_t0, v_t0, v_t1))
        g.e("v_add_f32 v%d, v%d, v%d" % (v_t2, v_t2, v_t3))
        g.e("v_add_f32 v%d, v%d, v%d" % (v_t0, v_t0, v_t2))
        g.e("v_add_f32 v%d, v%d, v%d" % (v_l, v_l, v_t0))
        g.e("s_waitcnt vmcnt(%d)" % wv)
        def perm(i):
            sel = s_selhi if (i & 1) else s_sello
            for y in range(4):
                lo = VB + 32 * b + 4 * (2 * y) + (i >> 1)
                hi = VB + 32 * b + 4 * (2 * y + 1) + (i >> 1)
                g.e("v_perm_b32 v%d, v%d, v%d, s%d" % (T + 4 * (i % 3) + y, hi, lo, sel))
        def pv(i):
            g.e("v_mfma_f32_16x16x32_bf16 %s, %s, %s, %s" % (vr(O + 4 * i, 4), vr(T + 4 * (i % 3), 4), vr(P, 4), vr(O + 4 * i, 4)))
        perm(0)
        for i in range(8):
            if i + 1 < 8:
                perm(i + 1)
            else:
                g.e("s_nop 1")
            pv(i)
        if pref:
            loadV(b)
            advance()

    NLOOP = (NT - DEPTH) // DEPTH
    W = 16 * DEPTH - 8
    if NLOOP > 0:
        g.e("s_mov_b32 s%d, %d" % (s_cnt, NLOOP))
        g.label("L_loop")
        for b in range(DEPTH):
            body(b, True, W, W, "m%d" % b)
        g.e("s_sub_u32 s%d, s%d, 1" % (s_cnt, s_cnt))
        g.e("s_cmp_lg_u32 s%d, 0" % s_cnt)
        g.e("s_cbranch_scc1 L_loop")
    for b in range(DEPTH):
        rem = DEPTH - b
        body(b, False, 16 * rem - 8, 16 * rem - 16, "e%d" % b)

    g.e("v_mov_b32 v%d, v%d" % (v_t1, v_l))
    g.e("s_nop 1")
    g.e("v_permlane32_swap_b32 v%d, v%d" % (v_l, v_t1))
    g.e("v_add_f32 v%d, v%d, v%d" % (v_l, v_l, v_t1))
    g.e("v_mov_b32 v%d, v%d" % (v_t1, v_l))
    g.e("s_nop 1")
    g.e("v_permlane16_swap_b32 v%d, v%d" % (v_l, v_t1))
    g.e("v_add_f32 v%d, v%d, v%d" % (v_l, v_l, v_t1))
    g.e("v_and_b32 v%d, 1, v%d" % (v_t0, v_lane))
    g.e("v_lshrrev_b32 v%d, 4, v%d" % (v_t1, v_lane))
    g.e("v_lshlrev_b32 v%d, 9, v%d" % (v_t2, v_t0))
    g.e("v_lshl_add_u32 v%d, v%d, 7, v%d" % (v_t2, v_t1, v_t2))
    g.e("s_lshl_b32 s%d, s%d, 10" % (s_tmp, s_wave))
    g.e("v_add_u32 v%d, s%d, v%d" % (v_t2, s_tmp, v_t2))
    g.e("s_lshl_b32 s%d, s%d, 4" % (s_tmp, s_wave))
    g.e("s_add_u32 s%d, s%d, %d" % (s_tmp, s_tmp, NW * 1024))
    g.e("v_lshlrev_b32 v%d, 3, v%d" % (v_t3, v_t0))
    g.e("v_add_u32 v%d, s%d, v%d" % (v_t3, s_tmp, v_t3))
    g.e("s_mov_b32 exec_lo, 0x00030003")
    g.e("s_mov_b32 exec_hi, 0x00030003")
    g.e("s_nop 4")
    for i in range(8):
        g.e("ds_write_b128 v%d, %s offset:%d" % (v_t2, vr(O + 4 * i, 4), 16 * i))
    g.e("ds_write_b64 v%d, %s" % (v_t3, vr(v_m, 2)))
    g.e("s_mov_b64 exec, -1")
    g.e("s_waitcnt lgkmcnt(0)")
    g.e("s_barrier")
    g.e("s_cmp_lg_u32 s%d, 0" % s_wave)
    g.e("s_cbranch_scc1 L_end")
    A = KB
    ML = KB + 4 * NW
    if ML & 1: ML += 1
    g.e("v_lshlrev_b32 v%d, 4, v%d" % (v_t0, v_lane))
    g.e("v_lshrrev_b32 v%d, 5, v%d" % (v_t1, v_lane))
    g.e("v_lshlrev_b32 v%d, 3, v%d" % (v_t1, v_t1))
    for w in range(NW):
        g.e("ds_read_b64 %s, v%d offset:%d" % (vr(ML + 2 * w, 2), v_t1, NW * 1024 + 16 * w))
    for w in range(NW):
        g.e("ds_read_b128 %s, v%d offset:%d" % (vr(A + 4 * w, 4), v_t0, 1024 * w))
    g.e("s_waitcnt lgkmcnt(0)")
    g.e("v_mov_b32 v%d, v%d" % (v_m, ML))
    for w in range(1, NW):
        g.e("v_max_f32 v%d, v%d, v%d" % (v_m, v_m, ML + 2 * w))
    for w in range(NW):
        g.e("v_sub_f32 v%d, v%d, v%d" % (ML + 2 * w, ML + 2 * w, v_m))
    for w in range(NW):
        g.e("v_exp_f32 v%d, v%d" % (ML + 2 * w, ML + 2 * w))
    g.e("s_nop 0")
    g.e("v_mul_f32 v%d, v%d, v%d" % (v_l, ML, ML + 1))
    for r in range(4):
        g.e("v_mul_f32 v%d, v%d, v%d" % (O + r, A + r, ML))
    for w in range(1, NW):
        g.e("v_fma_f32 v%d, v%d, v%d, v%d" % (v_l, ML + 2 * w, ML + 2 * w + 1, v_l))
        for r in range(4):
            g.e("v_fma_f32 v%d, v%d, v%d, v%d" % (O + r, A + 4 * w + r, ML + 2 * w, O + r))
    g.e("s_mul_i32 s%d, s%d, %d" % (s_tmp, s_pair, NSPLIT * 2048))
    g.e("s_add_u32 s%d, s%d, s%d" % (SX, kws, s_tmp))
    g.e("s_addc_u32 s%d, s%d, 0" % (SX + 1, kws + 1))
    g.e("s_mov_b32 s%d, %d" % (SX + 2, NSPLIT * 2048))
    g.e("s_mov_b32 s%d, 0x00020000" % (SX + 3))
    g.e("s_lshl_b32 s%d, s%d, 11" % (s_tmp, s_split))
    g.e("v_lshlrev_b32 v%d, 3, v%d" % (v_t1, v_lane))
    g.e("buffer_store_dwordx4 %s, v%d, s[%d:%d], s%d offen sc0 sc1" % (vr(O, 4), v_t0, SX, SX + 3, s_tmp))
    g.e("buffer_store_dwordx2 v[%d:%d], v%d, s[%d:%d], s%d offen offset:1024 sc0 sc1" % (v_m, v_m + 1, v_t1, SX, SX + 3, s_tmp))
    g.e("s_waitcnt vmcnt(0)")
    g.e("s_mov_b32 s%d, s%d" % (SK, kdbg))
    g.e("s_mov_b32 s%d, s%d" % (SK + 1, kdbg + 1))
    g.e("s_mov_b32 s%d, 256" % (SK + 2))
    g.e("s_mov_b32 s%d, 0x00020000" % (SK + 3))
    g.e("s_and_b32 s%d, s%d, 1" % (s_tmp, s_pair))
    g.e("s_lshl_b32 s%d, s%d, 4" % (s_tmp, s_tmp))
    g.e("s_lshl_b32 s%d, 1, s%d" % (s_tmp2, s_tmp))
    g.e("v_mov_b32 v%d, s%d" % (v_t2, s_tmp2))
    g.e("s_lshr_b32 s%d, s%d, 1" % (s_tmp2, s_pair))
    g.e("s_lshl_b32 s%d, s%d, 2" % (s_tmp2, s_tmp2))
    g.e("v_mov_b32 v%d, s%d" % (v_t3, s_tmp2))
    g.e("s_mov_b64 exec, 1")
    g.e("buffer_atomic_add v%d, v%d, s[%d:%d], 0 offen sc0" % (v_t2, v_t3, SK, SK + 3))
    g.e("s_waitcnt vmcnt(0)")
    g.e("v_readfirstlane_b32 s%d, v%d" % (s_tmp2, v_t2))
    g.e("s_mov_b64 exec, -1")
    g.e("s_lshr_b32 s%d, s%d, s%d" % (s_tmp2, s_tmp2, s_tmp))
    g.e("s_and_b32 s%d, s%d, 0xffff" % (s_tmp2, s_tmp2))
    g.e("s_cmp_lg_u32 s%d, %d" % (s_tmp2, NSPLIT - 1))
    g.e("s_cbranch_scc1 L_end")
    A = KB
    ML = KB + 4 * NSPLIT
    for sp in range(NSPLIT):
        g.e("s_mov_b32 s%d, %d" % (s_tmp, sp * 2048))
        g.e("buffer_load_dwordx4 %s, v%d, s[%d:%d], s%d offen sc0 sc1" % (vr(A + 4 * sp, 4), v_t0, SX, SX + 3, s_tmp))
        g.e("buffer_load_dwordx2 %s, v%d, s[%d:%d], s%d offen offset:1024 sc0 sc1" % (vr(ML + 2 * sp, 2), v_t1, SX, SX + 3, s_tmp))
    g.e("s_waitcnt vmcnt(0)")
    g.e("v_mov_b32 v%d, v%d" % (v_m, ML))
    for w in range(1, NSPLIT):
        g.e("v_max_f32 v%d, v%d, v%d" % (v_m, v_m, ML + 2 * w))
    for w in range(NSPLIT):
        g.e("v_sub_f32 v%d, v%d, v%d" % (ML + 2 * w, ML + 2 * w, v_m))
    for w in range(NSPLIT):
        g.e("v_exp_f32 v%d, v%d" % (ML + 2 * w, ML + 2 * w))
    g.e("s_nop 0")
    g.e("v_mul_f32 v%d, v%d, v%d" % (v_l, ML, ML + 1))
    for r in range(4):
        g.e("v_mul_f32 v%d, v%d, v%d" % (O + r, A + r, ML))
    for w in range(1, NSPLIT):
        g.e("v_fma_f32 v%d, v%d, v%d, v%d" % (v_l, ML + 2 * w, ML + 2 * w + 1, v_l))
        for r in range(4):
            g.e("v_fma_f32 v%d, v%d, v%d, v%d" % (O + r, A + 4 * w + r, ML + 2 * w, O + r))
    g.e("v_rcp_f32 v%d, v%d" % (v_l, v_l))
    g.e("s_nop 0")
    for r in range(4):
        g.e("v_mul_f32 v%d, v%d, v%d" % (O + r, O + r, v_l))
    g.e("v_cvt_pk_bf16_f32 v%d, v%d, v%d" % (P, O, O + 1))
    g.e("v_cvt_pk_bf16_f32 v%d, v%d, v%d" % (P + 1, O + 2, O + 3))
    g.e("s_lshl_b32 s%d, s%d, 9" % (s_tmp, s_pair))
    g.e("s_add_u32 s%d, s%d, s%d" % (SK, kout, s_tmp))
    g.e("s_addc_u32 s%d, s%d, 0" % (SK + 1, kout + 1))
    g.e("s_mov_b32 s%d, 512" % (SK + 2))
    g.e("v_lshrrev_b32 v%d, 3, v%d" % (v_t0, v_lane))
    g.e("v_lshlrev_b32 v%d, 6, v%d" % (v_t0, v_t0))
    g.e("v_and_b32 v%d, 7, v%d" % (v_t1, v_lane))
    g.e("v_lshl_add_u32 v%d, v%d, 1, v%d" % (v_t0, v_t1, v_t0))
    g.e("buffer_store_short v%d, v%d, s[%d:%d], 0 offen" % (P, v_t0, SK, SK + 3))
    g.e("buffer_store_short_d16_hi v%d, v%d, s[%d:%d], 0 offen offset:16" % (P, v_t0, SK, SK + 3))
    g.e("buffer_store_short v%d, v%d, s[%d:%d], 0 offen offset:32" % (P + 1, v_t0, SK, SK + 3))
    g.e("buffer_store_short_d16_hi v%d, v%d, s[%d:%d], 0 offen offset:48" % (P + 1, v_t0, SK, SK + 3))
    g.label("L_end")
    g.e("s_endpgm")

    lds = NW * 1024 + NW * 16
    nv = (nvgpr + 7) // 8 * 8
    out = HEADER
    out += "; @launch grid=(%d,1,1) block=(%d,1,1) lds=%d\n" % (NWG, NW * 64, lds)
    out += '.amdgcn_target "amdgcn-amd-amdhsa--gfx950"\n.text\n.globl %s_kernel\n.p2align 8\n.type %s_kernel,@function\n%s_kernel:\n' % (NAME, NAME, NAME)
    out += g.text()
    out += """.section .rodata,"a"
.p2align 6
.amdhsa_kernel %s_kernel
  .amdhsa_next_free_vgpr %d
  .amdhsa_next_free_sgpr 64
  .amdhsa_accum_offset %d
  .amdhsa_group_segment_fixed_size 0
  .amdhsa_kernarg_size 72
  .amdhsa_user_sgpr_count 2
  .amdhsa_user_sgpr_kernarg_segment_ptr 1
  .amdhsa_system_sgpr_workgroup_id_x 1
.end_amdhsa_kernel
""" % (NAME, nv, nv)
    return out

if __name__ == "__main__":
    ap = argparse.ArgumentParser()
    ap.add_argument("-o", required=True)
    ap.add_argument("--nw", type=int, default=8)
    ap.add_argument("--nsplit", type=int, default=2)
    ap.add_argument("--depth", type=int, default=2)
    ap.add_argument("--kflags", default="")
    ap.add_argument("--vflags", default="")
    ap.add_argument("--map", default="pairmajor")
    a = ap.parse_args()
    open(a.o, "w").write(gen(NW=a.nw, NSPLIT=a.nsplit, DEPTH=a.depth, KFLAGS=a.kflags, VFLAGS=a.vflags, MAP=a.map))
```

```python
import sys, argparse

NAME = "standalone__tree_speculative_verify_tree_attention_over_candidate_token_tree__sampling"

HEADER = """; Kernarg layout for this problem (72 bytes, ptrs only, base s[0:1]):
"""

class Gen:
    def __init__(self):
        self.lines = []
    def e(self, s):
        self.lines.append("    " + s)
    def label(self, s):
        self.lines.append(s + ":")
    def c(self, s):
        self.lines.append("    ; " + s)
    def text(self):
        return "\n".join(self.lines) + "\n"

def vr(base, n=1):
    if n == 1:
        return "v%d" % base
    return "v[%d:%d]" % (base, base + n - 1)
def sr(base, n=1):
    if n == 1:
        return "s%d" % base
    return "s[%d:%d]" % (base, base + n - 1)

def gen(NW=8, NSPLIT=2, DEPTH=2, KFLAGS="", VFLAGS="", SKIPBR=True, MAP="pairmajor", STAMPS=False, KACC=False, LDS=None):
    g = Gen()
    NPAIR = 128
    NWG = NPAIR * NSPLIT
    CHUNK = 8192 * 256 // NSPLIT
    NT = 8192 // NSPLIT // 32 // NW
    assert NT >= DEPTH
    TSTRIDE = NW * 8192
    v_tid = 0
    v_koff = 1
    v_voff = 2
    v_lane = 3
    v_m = 4
    v_l = 5
    v_t0 = 6
    v_t1 = 7
    v_al = 8
    v_mn = 9
    v_t2 = 10
    v_t3 = 11
    Q = 12
    S = Q + 16
    P = S + 8
    T = P + 4
    O = T + 12
    if KACC:
        VB = O + 32
        KB = 0
        VEND = VB + 32 * DEPTH
        XB = VB
    else:
        KB = O + 32
        VB = KB + 32 * DEPTH
        VEND = VB + 32 * DEPTH
        XB = KB
    nvgpr = VEND
    def kr(base, n):
        return ("a[%d:%d]" if KACC else "v[%d:%d]") % (base, base + n - 1)
    s_wg = 2
    s_pair = 3
    s_split = 4
    s_wave = 5
    s_c = 6
    s_sello = 7
    SK = 8
    SV = 12
    SX = 16
    s_ko = 20
    s_ko2 = 21
    s_cnt = 22
    s_selhi = 23
    s_ptr = 24
    s_tmp = 44
    s_tmp2 = 45
    s_ex = 46

    kq, kk, kv, kkt, kvt, kmask, kout, kdbg, kws = [s_ptr + 2 * i for i in range(9)]

    g.e("s_cmp_ge_u32 s2, %d" % NWG)
    g.e("s_cbranch_scc1 L_end")
    if STAMPS:
        g.e("s_memrealtime s[48:49]")
    g.e("s_load_dwordx16 s[24:39], s[0:1], 0")
    g.e("s_load_dwordx2 s[40:41], s[0:1], 64")
    if MAP == "pairmajor":
        g.e("s_lshr_b32 s%d, s2, %d" % (s_pair, NSPLIT.bit_length() - 1))
        g.e("s_and_b32 s%d, s2, %d" % (s_split, NSPLIT - 1))
    else:
        g.e("s_and_b32 s%d, s2, 127" % s_pair)
        g.e("s_lshr_b32 s%d, s2, 7" % s_split)
    g.e("v_lshrrev_b32 v%d, 6, v0" % v_t0)
    g.e("v_and_b32 v%d, 63, v0" % v_lane)
    g.e("v_readfirstlane_b32 s%d, v%d" % (s_wave, v_t0))
    g.e("v_and_b32 v%d, 3, v%d" % (v_t0, v_lane))
    g.e("v_lshlrev_b32 v%d, 10, v%d" % (v_t0, v_t0))
    g.e("v_bfe_u32 v%d, v%d, 2, 2" % (v_t1, v_lane))
    g.e("v_lshl_add_u32 v%d, v%d, 8, v%d" % (v_t0, v_t1, v_t0))
    g.e("v_lshrrev_b32 v%d, 4, v%d" % (v_t2, v_lane))
    g.e("v_lshl_add_u32 v%d, v%d, 4, v%d" % (v_koff, v_t2, v_t0))
    g.e("v_lshlrev_b32 v%d, 4, v%d" % (v_voff, v_lane))
    g.e("v_and_b32 v%d, 1, v%d" % (v_t1, v_lane))
    g.e("v_lshlrev_b32 v%d, 8, v%d" % (v_t1, v_t1))
    g.e("v_lshl_add_u32 v%d, v%d, 4, v%d" % (v_t3, v_t2, v_t1))
    g.e("s_mov_b32 s%d, 0x3e0293ee" % s_c)
    g.e("s_mov_b32 s%d, 0x05040100" % s_sello)
    g.e("s_mov_b32 s%d, 0x07060302" % s_selhi)
    g.e("s_lshl_b32 s%d, s%d, 21" % (s_tmp, s_pair))
    g.e("s_mul_i32 s%d, s%d, %d" % (s_tmp2, s_split, CHUNK))
    g.e("s_add_u32 s%d, s%d, s%d" % (s_tmp, s_tmp, s_tmp2))
    g.e("s_lshl_b32 s%d, s%d, 13" % (s_ko, s_wave))
    g.e("s_add_u32 s%d, s%d, 4096" % (s_ko2, s_ko))
    g.e("s_waitcnt lgkmcnt(0)")
    g.e("s_lshl_b32 s%d, s%d, 9" % (s_tmp2, s_pair))
    g.e("s_add_u32 s%d, s%d, s%d" % (SX, kq, s_tmp2))
    g.e("s_addc_u32 s%d, s%d, 0" % (SX + 1, kq + 1))
    g.e("s_mov_b32 s%d, 512" % (SX + 2))
    g.e("s_mov_b32 s%d, 0x00020000" % (SX + 3))
    for j in range(4):
        g.e("buffer_load_dwordx4 %s, v%d, s[%d:%d], 0 offen offset:%d" % (vr(Q + 4 * j, 4), v_t3, SX, SX + 3, 64 * j))
    g.e("s_add_u32 s%d, s%d, s%d" % (SK, kk, s_tmp))
    g.e("s_addc_u32 s%d, s%d, 0" % (SK + 1, kk + 1))
    g.e("s_mov_b32 s%d, %d" % (SK + 2, CHUNK))
    g.e("s_mov_b32 s%d, 0x00020000" % (SK + 3))
    g.e("s_add_u32 s%d, s%d, s%d" % (SV, kv, s_tmp))
    g.e("s_addc_u32 s%d, s%d, 0" % (SV + 1, kv + 1))
    g.e("s_mov_b32 s%d, %d" % (SV + 2, CHUNK))
    g.e("s_mov_b32 s%d, 0x00020000" % (SV + 3))

    def loadK(b):
        for t in range(2):
            for j in range(4):
                g.e("buffer_load_dwordx4 %s, v%d, s[%d:%d], s%d offen offset:%d %s" % (
                    kr(KB + 32 * b + 16 * t + 4 * j, 4), v_koff, SK, SK + 3, (s_ko, s_ko2)[t], 64 * j, KFLAGS))
    def loadV(b):
        for x in range(8):
            g.e("buffer_load_dwordx4 %s, v%d, s[%d:%d], s%d offen offset:%d %s" % (
                vr(VB + 32 * b + 4 * x, 4), v_voff, SV, SV + 3, (s_ko, s_ko2)[x >> 2], 1024 * (x & 3), VFLAGS))
    def advance():
        g.e("s_add_u32 s%d, s%d, %d" % (s_ko, s_ko, TSTRIDE))
        g.e("s_add_u32 s%d, s%d, %d" % (s_ko2, s_ko2, TSTRIDE))

    g.e("s_or_b32 s%d, s%d, s%d" % (s_tmp2, s_wave, s_split))
    g.e("s_cmp_eq_u32 s%d, 0" % s_tmp2)
    g.e("s_cbranch_scc1 L_tree")
    for b in range(DEPTH):
        loadK(b); loadV(b); advance()
    g.e("v_mov_b32 v%d, 0xff7fffff" % v_m)
    g.e("v_mov_b32 v%d, 0" % v_l)
    for i in range(32):
        g.e("v_mov_b32 v%d, 0" % (O + i))
    g.e("s_branch L_loop_entry")
    g.label("L_tree")
    g.e("s_lshl_b32 s%d, s%d, 8" % (s_tmp2, s_pair))
    g.e("s_add_u32 s%d, s%d, s%d" % (SX, kkt, s_tmp2))
    g.e("s_addc_u32 s%d, s%d, 0" % (SX + 1, kkt + 1))
    g.e("s_mov_b32 s%d, 256" % (SX + 2))
    g.e("v_lshrrev_b32 v%d, 4, v%d" % (v_t2, v_lane))
    g.e("v_lshlrev_b32 v%d, 4, v%d" % (v_t0, v_t2))
    for j in range(4):
        g.e("buffer_load_dwordx4 %s, v%d, s[%d:%d], 0 offen offset:%d" % (vr(O + 4 * j, 4), v_t0, SX, SX + 3, 64 * j))
    g.e("s_add_u32 s%d, s%d, s%d" % (SX, kvt, s_tmp2))
    g.e("s_addc_u32 s%d, s%d, 0" % (SX + 1, kvt + 1))
    g.e("v_lshlrev_b32 v%d, 6, v%d" % (v_t0, v_t2))
    for r in range(4):
        g.e("buffer_load_dwordx4 %s, v%d, s[%d:%d], 0 offen offset:%d" % (vr(O + 16 + 4 * r, 4), v_t0, SX, SX + 3, 16 * r))
    g.e("s_lshr_b32 s%d, s%d, 4" % (s_tmp2, s_pair))
    g.e("s_lshl_b32 s%d, s%d, 1" % (s_tmp2, s_tmp2))
    g.e("s_mov_b32 s%d, s%d" % (SX, kmask))
    g.e("s_mov_b32 s%d, s%d" % (SX + 1, kmask + 1))
    g.e("s_mov_b32 s%d, 16" % (SX + 2))
    g.e("v_mov_b32 v%d, s%d" % (v_t0, s_tmp2))
    g.e("buffer_load_ushort v%d, v%d, s[%d:%d], 0 offen" % (v_t1, v_t0, SX, SX + 3))
    for b in range(DEPTH):
        loadK(b); loadV(b); advance()
    g.e("s_waitcnt vmcnt(%d)" % (16 * DEPTH))
    g.e("v_mfma_f32_16x16x32_bf16 %s, %s, %s, 0" % (vr(S, 4), vr(O, 4), vr(Q, 4)))
    for j in range(1, 4):
        g.e("v_mfma_f32_16x16x32_bf16 %s, %s, %s, %s" % (vr(S, 4), vr(O + 4 * j, 4), vr(Q + 4 * j, 4), vr(S, 4)))
    g.e("v_lshlrev_b32 v%d, 16, v%d" % (v_t1, v_t1))
    g.e("v_sub_f32 v%d, 1.0, v%d" % (v_t1, v_t1))
    g.e("v_mul_f32 v%d, 0xceabfb8f, v%d" % (v_t1, v_t1))
    tmpv = S + 4
    for i in range(16):
        g.e("v_mov_b32 v%d, v%d" % (tmpv + i, O + 16 + i))
    g.e("s_nop 4")
    g.e("v_fma_f32 v%d, v%d, s%d, v%d" % (v_m, S, s_c, v_t1))
    for i in range(8):
        for r in range(4):
            src = tmpv + 4 * r + (i >> 1)
            if i & 1:
                g.e("v_and_b32 v%d, 0xffff0000, v%d" % (O + 4 * i + r, src))
            else:
                g.e("v_lshlrev_b32 v%d, 16, v%d" % (O + 4 * i + r, src))
    g.e("v_cmp_gt_u32 vcc, 16, v%d" % v_lane)
    g.e("s_nop 1")
    g.e("v_cndmask_b32 v%d, 0, 1.0, vcc" % v_l)
    g.label("L_loop_entry")
    if STAMPS:
        g.e("s_waitcnt vmcnt(%d)" % (16 * DEPTH - 8))
        g.e("s_memrealtime s[50:51]")

    def body(b, pref, wk, wv, tag):
        g.e("s_waitcnt vmcnt(%d)" % wk)
        for j in range(4):
            for t in range(2):
                c = "0" if j == 0 else vr(S + 4 * t, 4)
                g.e("v_mfma_f32_16x16x32_bf16 %s, %s, %s, %s" % (vr(S + 4 * t, 4), kr(KB + 32 * b + 16 * t + 4 * j, 4), vr(Q + 4 * j, 4), c))
        if pref:
            loadK(b)
        else:
            g.e("s_nop 7")
        g.e("v_max3_f32 v%d, v%d, v%d, v%d" % (v_t0, S, S + 1, S + 2))
        g.e("v_max3_f32 v%d, v%d, v%d, v%d" % (v_t1, S + 3, S + 4, S + 5))
        g.e("v_max3_f32 v%d, v%d, v%d, v%d" % (v_t0, v_t0, S + 6, S + 7))
        g.e("v_max_f32 v%d, v%d, v%d" % (v_t0, v_t0, v_t1))
        g.e("v_mov_b32 v%d, v%d" % (v_t1, v_t0))
        g.e("s_nop 1")
        g.e("v_permlane32_swap_b32 v%d, v%d" % (v_t0, v_t1))
        g.e("v_max_f32 v%d, v%d, v%d" % (v_t0, v_t0, v_t1))
        g.e("v_mov_b32 v%d, v%d" % (v_t1, v_t0))
        g.e("s_nop 1")
        g.e("v_permlane16_swap_b32 v%d, v%d" % (v_t0, v_t1))
        g.e("v_max_f32 v%d, v%d, v%d" % (v_t0, v_t0, v_t1))
        g.e("v_mul_f32 v%d, s%d, v%d" % (v_t0, s_c, v_t0))
        if SKIPBR:
            g.e("v_cmp_gt_f32 vcc, v%d, v%d" % (v_t0, v_m))
            g.e("s_cbranch_vccz L_skip_%s" % tag)
        g.e("v_max_f32 v%d, v%d, v%d" % (v_mn, v_m, v_t0))
        g.e("v_sub_f32 v%d, v%d, v%d" % (v_t1, v_m, v_mn))
        g.e("v_exp_f32 v%d, v%d" % (v_al, v_t1))
        g.e("v_mov_b32 v%d, v%d" % (v_m, v_mn))
        g.e("v_mul_f32 v%d, v%d, v%d" % (v_l, v_l, v_al))
        for i in range(32):
            g.e("v_mul_f32 v%d, v%d, v%d" % (O + i, O + i, v_al))
        if SKIPBR:
            g.label("L_skip_%s" % tag)
        for i in range(8):
            g.e("v_fma_f32 v%d, v%d, s%d, -v%d" % (S + i, S + i, s_c, v_m))
        for i in range(8):
            g.e("v_exp_f32 v%d, v%d" % (S + i, S + i))
        g.e("s_nop 0")
        for y in range(4):
            g.e("v_cvt_pk_bf16_f32 v%d, v%d, v%d" % (P + y, S + 2 * y, S + 2 * y + 1))
        g.e("v_add_f32 v%d, v%d, v%d" % (v_t0, S, S + 1))
        g.e("v_add_f32 v%d, v%d, v%d" % (v_t1, S + 2, S + 3))
        g.e("v_add_f32 v%d, v%d, v%d" % (v_t2, S + 4, S + 5))
        g.e("v_add_f32 v%d, v%d, v%d" % (v_t3, S + 6, S + 7))
        g.e("v_add_f32 v%d, v%d, v%d" % (v_t0, v_t0, v_t1))
        g.e("v_add_f32 v%d, v%d, v%d" % (v_t2, v_t2, v_t3))
        g.e("v_add_f32 v%d, v%d, v%d" % (v_t0, v_t0, v_t2))
        g.e("v_add_f32 v%d, v%d, v%d" % (v_l, v_l, v_t0))
        g.e("s_waitcnt vmcnt(%d)" % wv)
        def perm(i):
            sel = s_selhi if (i & 1) else s_sello
            for y in range(4):
                lo = VB + 32 * b + 4 * (2 * y) + (i >> 1)
                hi = VB + 32 * b + 4 * (2 * y + 1) + (i >> 1)
                g.e("v_perm_b32 v%d, v%d, v%d, s%d" % (T + 4 * (i % 3) + y, hi, lo, sel))
        def pv(i):
            g.e("v_mfma_f32_16x16x32_bf16 %s, %s, %s, %s" % (vr(O + 4 * i, 4), vr(T + 4 * (i % 3), 4), vr(P, 4), vr(O + 4 * i, 4)))
        perm(0)
        for i in range(8):
            if i + 1 < 8:
                perm(i + 1)
            else:
                g.e("s_nop 1")
            pv(i)
        if pref:
            loadV(b)
            advance()

    NLOOP = (NT - DEPTH) // DEPTH
    W = 16 * DEPTH - 8
    if NLOOP > 0:
        g.e("s_mov_b32 s%d, %d" % (s_cnt, NLOOP))
        g.label("L_loop")
        for b in range(DEPTH):
            body(b, True, W, W, "m%d" % b)
        g.e("s_sub_u32 s%d, s%d, 1" % (s_cnt, s_cnt))
        g.e("s_cmp_lg_u32 s%d, 0" % s_cnt)
        g.e("s_cbranch_scc1 L_loop")
    R = (NT - DEPTH) % DEPTH
    q = []
    for b in range(DEPTH):
        q += [("K", b), ("V", b)]
    for k in range(R + DEPTH):
        b = k % DEPTH
        pref = k < R
        i = q.index(("K", b))
        wk = 8 * (len(q) - 1 - i)
        q = q[i + 1:]
        if pref:
            q.append(("K", b))
        i = q.index(("V", b))
        wv = 8 * (len(q) - 1 - i)
        q = q[i + 1:]
        if pref:
            q.append(("V", b))
        body(b, pref, wk, wv, "e%d" % k)

    g.e("v_mov_b32 v%d, v%d" % (v_t1, v_l))
    g.e("s_nop 1")
    g.e("v_permlane32_swap_b32 v%d, v%d" % (v_l, v_t1))
    g.e("v_add_f32 v%d, v%d, v%d" % (v_l, v_l, v_t1))
    g.e("v_mov_b32 v%d, v%d" % (v_t1, v_l))
    g.e("s_nop 1")
    g.e("v_permlane16_swap_b32 v%d, v%d" % (v_l, v_t1))
    g.e("v_add_f32 v%d, v%d, v%d" % (v_l, v_l, v_t1))
    g.e("v_and_b32 v%d, 1, v%d" % (v_t0, v_lane))
    g.e("v_lshrrev_b32 v%d, 4, v%d" % (v_t1, v_lane))
    g.e("v_lshlrev_b32 v%d, 9, v%d" % (v_t2, v_t0))
    g.e("v_lshl_add_u32 v%d, v%d, 7, v%d" % (v_t2, v_t1, v_t2))
    g.e("s_lshl_b32 s%d, s%d, 10" % (s_tmp, s_wave))
    g.e("v_add_u32 v%d, s%d, v%d" % (v_t2, s_tmp, v_t2))
    g.e("s_lshl_b32 s%d, s%d, 4" % (s_tmp, s_wave))
    g.e("s_add_u32 s%d, s%d, %d" % (s_tmp, s_tmp, NW * 1024))
    g.e("v_lshlrev_b32 v%d, 3, v%d" % (v_t3, v_t0))
    g.e("v_add_u32 v%d, s%d, v%d" % (v_t3, s_tmp, v_t3))
    g.e("s_mov_b32 exec_lo, 0x00030003")
    g.e("s_mov_b32 exec_hi, 0x00030003")
    g.e("s_nop 4")
    for i in range(8):
        g.e("ds_write_b128 v%d, %s offset:%d" % (v_t2, vr(O + 4 * i, 4), 16 * i))
    g.e("ds_write_b64 v%d, %s" % (v_t3, vr(v_m, 2)))
    g.e("s_mov_b64 exec, -1")
    g.e("s_waitcnt lgkmcnt(0)")
    g.e("s_barrier")
    g.e("s_cmp_lg_u32 s%d, 0" % s_wave)
    g.e("s_cbranch_scc1 L_end")
    if STAMPS:
        g.e("s_memrealtime s[52:53]")
    A = XB
    ML = XB + 4 * NW
    if ML & 1: ML += 1
    g.e("v_lshlrev_b32 v%d, 4, v%d" % (v_t0, v_lane))
    g.e("v_lshrrev_b32 v%d, 5, v%d" % (v_t1, v_lane))
    g.e("v_lshlrev_b32 v%d, 3, v%d" % (v_t1, v_t1))
    for w in range(NW):
        g.e("ds_read_b64 %s, v%d offset:%d" % (vr(ML + 2 * w, 2), v_t1, NW * 1024 + 16 * w))
    for w in range(NW):
        g.e("ds_read_b128 %s, v%d offset:%d" % (vr(A + 4 * w, 4), v_t0, 1024 * w))
    g.e("s_waitcnt lgkmcnt(0)")
    g.e("v_mov_b32 v%d, v%d" % (v_m, ML))
    for w in range(1, NW):
        g.e("v_max_f32 v%d, v%d, v%d" % (v_m, v_m, ML + 2 * w))
    for w in range(NW):
        g.e("v_sub_f32 v%d, v%d, v%d" % (ML + 2 * w, ML + 2 * w, v_m))
    for w in range(NW):
        g.e("v_exp_f32 v%d, v%d" % (ML + 2 * w, ML + 2 * w))
    g.e("s_nop 0")
    g.e("v_mul_f32 v%d, v%d, v%d" % (v_l, ML, ML + 1))
    for r in range(4):
        g.e("v_mul_f32 v%d, v%d, v%d" % (O + r, A + r, ML))
    for w in range(1, NW):
        g.e("v_fma_f32 v%d, v%d, v%d, v%d" % (v_l, ML + 2 * w, ML + 2 * w + 1, v_l))
        for r in range(4):
            g.e("v_fma_f32 v%d, v%d, v%d, v%d" % (O + r, A + 4 * w + r, ML + 2 * w, O + r))
    g.e("s_mul_i32 s%d, s%d, %d" % (s_tmp, s_pair, NSPLIT * 2048))
    g.e("s_add_u32 s%d, s%d, s%d" % (SX, kws, s_tmp))
    g.e("s_addc_u32 s%d, s%d, 0" % (SX + 1, kws + 1))
    g.e("s_mov_b32 s%d, %d" % (SX + 2, NSPLIT * 2048))
    g.e("s_mov_b32 s%d, 0x00020000" % (SX + 3))
    g.e("s_lshl_b32 s%d, s%d, 11" % (s_tmp, s_split))
    g.e("v_lshlrev_b32 v%d, 3, v%d" % (v_t1, v_lane))
    g.e("buffer_store_dwordx4 %s, v%d, s[%d:%d], s%d offen sc0 sc1" % (vr(O, 4), v_t0, SX, SX + 3, s_tmp))
    g.e("buffer_store_dwordx2 v[%d:%d], v%d, s[%d:%d], s%d offen offset:1024 sc0 sc1" % (v_m, v_m + 1, v_t1, SX, SX + 3, s_tmp))
    g.e("s_waitcnt vmcnt(0)")
    g.e("s_mov_b32 s%d, s%d" % (SK, kdbg))
    g.e("s_mov_b32 s%d, s%d" % (SK + 1, kdbg + 1))
    g.e("s_mov_b32 s%d, 256" % (SK + 2))
    g.e("s_mov_b32 s%d, 0x00020000" % (SK + 3))
    g.e("s_and_b32 s%d, s%d, 1" % (s_tmp, s_pair))
    g.e("s_lshl_b32 s%d, s%d, 4" % (s_tmp, s_tmp))
    g.e("s_lshl_b32 s%d, 1, s%d" % (s_tmp2, s_tmp))
    g.e("v_mov_b32 v%d, s%d" % (v_t2, s_tmp2))
    g.e("s_lshr_b32 s%d, s%d, 1" % (s_tmp2, s_pair))
    g.e("s_lshl_b32 s%d, s%d, 2" % (s_tmp2, s_tmp2))
    g.e("v_mov_b32 v%d, s%d" % (v_t3, s_tmp2))
    g.e("s_mov_b64 exec, 1")
    g.e("buffer_atomic_add v%d, v%d, s[%d:%d], 0 offen sc0" % (v_t2, v_t3, SK, SK + 3))
    g.e("s_waitcnt vmcnt(0)")
    g.e("v_readfirstlane_b32 s%d, v%d" % (s_tmp2, v_t2))
    g.e("s_mov_b64 exec, -1")
    g.e("s_lshr_b32 s%d, s%d, s%d" % (s_tmp2, s_tmp2, s_tmp))
    g.e("s_and_b32 s%d, s%d, 0xffff" % (s_tmp2, s_tmp2))
    g.e("s_cmp_lg_u32 s%d, %d" % (s_tmp2, NSPLIT - 1))
    g.e("s_cbranch_scc1 L_fin")
    A = XB
    ML = XB + 4 * NSPLIT
    for sp in range(NSPLIT):
        g.e("s_mov_b32 s%d, %d" % (s_tmp, sp * 2048))
        g.e("buffer_load_dwordx4 %s, v%d, s[%d:%d], s%d offen sc0 sc1" % (vr(A + 4 * sp, 4), v_t0, SX, SX + 3, s_tmp))
        g.e("buffer_load_dwordx2 %s, v%d, s[%d:%d], s%d offen offset:1024 sc0 sc1" % (vr(ML + 2 * sp, 2), v_t1, SX, SX + 3, s_tmp))
    g.e("s_waitcnt vmcnt(0)")
    g.e("v_mov_b32 v%d, v%d" % (v_m, ML))
    for w in range(1, NSPLIT):
        g.e("v_max_f32 v%d, v%d, v%d" % (v_m, v_m, ML + 2 * w))
    for w in range(NSPLIT):
        g.e("v_sub_f32 v%d, v%d, v%d" % (ML + 2 * w, ML + 2 * w, v_m))
    for w in range(NSPLIT):
        g.e("v_exp_f32 v%d, v%d" % (ML + 2 * w, ML + 2 * w))
    g.e("s_nop 0")
    g.e("v_mul_f32 v%d, v%d, v%d" % (v_l, ML, ML + 1))
    for r in range(4):
        g.e("v_mul_f32 v%d, v%d, v%d" % (O + r, A + r, ML))
    for w in range(1, NSPLIT):
        g.e("v_fma_f32 v%d, v%d, v%d, v%d" % (v_l, ML + 2 * w, ML + 2 * w + 1, v_l))
        for r in range(4):
            g.e("v_fma_f32 v%d, v%d, v%d, v%d" % (O + r, A + 4 * w + r, ML + 2 * w, O + r))
    g.e("v_rcp_f32 v%d, v%d" % (v_l, v_l))
    g.e("s_nop 0")
    for r in range(4):
        g.e("v_mul_f32 v%d, v%d, v%d" % (O + r, O + r, v_l))
    g.e("v_cvt_pk_bf16_f32 v%d, v%d, v%d" % (P, O, O + 1))
    g.e("v_cvt_pk_bf16_f32 v%d, v%d, v%d" % (P + 1, O + 2, O + 3))
    g.e("s_lshl_b32 s%d, s%d, 9" % (s_tmp, s_pair))
    g.e("s_add_u32 s%d, s%d, s%d" % (SK, kout, s_tmp))
    g.e("s_addc_u32 s%d, s%d, 0" % (SK + 1, kout + 1))
    g.e("s_mov_b32 s%d, 512" % (SK + 2))
    g.e("v_lshrrev_b32 v%d, 3, v%d" % (v_t0, v_lane))
    g.e("v_lshlrev_b32 v%d, 6, v%d" % (v_t0, v_t0))
    g.e("v_and_b32 v%d, 7, v%d" % (v_t1, v_lane))
    g.e("v_lshl_add_u32 v%d, v%d, 1, v%d" % (v_t0, v_t1, v_t0))
    g.e("buffer_store_short v%d, v%d, s[%d:%d], 0 offen" % (P, v_t0, SK, SK + 3))
    g.e("buffer_store_short_d16_hi v%d, v%d, s[%d:%d], 0 offen offset:16" % (P, v_t0, SK, SK + 3))
    g.e("buffer_store_short v%d, v%d, s[%d:%d], 0 offen offset:32" % (P + 1, v_t0, SK, SK + 3))
    g.e("buffer_store_short_d16_hi v%d, v%d, s[%d:%d], 0 offen offset:48" % (P + 1, v_t0, SK, SK + 3))
    g.label("L_fin")
    if STAMPS:
        g.e("s_waitcnt vmcnt(0)")
        g.e("s_memrealtime s[54:55]")
        g.e("s_getreg_b32 s56, hwreg(HW_REG_XCC_ID)")
        g.e("s_getreg_b32 s57, hwreg(HW_REG_HW_ID)")
        g.e("s_lshl_b32 s44, s2, 6")
        g.e("s_add_u32 s44, s44, 0x20000000")
        g.e("s_add_u32 s16, s40, s44")
        g.e("s_addc_u32 s17, s41, 0")
        g.e("s_mov_b32 s18, 64")
        g.e("s_mov_b32 s19, 0x00020000")
        g.e("s_waitcnt lgkmcnt(0)")
        for i in range(10):
            g.e("v_mov_b32 v%d, s%d" % (12 + i, 48 + i))
        g.e("v_mov_b32 v10, 0")
        g.e("s_mov_b64 exec, 1")
        g.e("buffer_store_dwordx4 v[12:15], v10, s[16:19], 0 offen")
        g.e("buffer_store_dwordx4 v[16:19], v10, s[16:19], 0 offen offset:16")
        g.e("buffer_store_dwordx2 v[20:21], v10, s[16:19], 0 offen offset:32")
    g.label("L_end")
    g.e("s_endpgm")

    lds = NW * 1024 + NW * 16
    if LDS: lds = max(lds, LDS)
    nv = (nvgpr + 7) // 8 * 8
    acc_off = nv
    if KACC: nv = nv + 32 * DEPTH
    out = HEADER
    out += "; @launch grid=(%d,1,1) block=(%d,1,1) lds=%d\n" % (NWG, NW * 64, lds)
    out += '.amdgcn_target "amdgcn-amd-amdhsa--gfx950"\n.text\n.globl %s_kernel\n.p2align 8\n.type %s_kernel,@function\n%s_kernel:\n' % (NAME, NAME, NAME)
    out += g.text()
    out += """.section .rodata,"a"
.p2align 6
.amdhsa_kernel %s_kernel
  .amdhsa_next_free_vgpr %d
  .amdhsa_next_free_sgpr 64
  .amdhsa_accum_offset %d
  .amdhsa_group_segment_fixed_size 0
  .amdhsa_kernarg_size 72
  .amdhsa_user_sgpr_count 2
  .amdhsa_user_sgpr_kernarg_segment_ptr 1
  .amdhsa_system_sgpr_workgroup_id_x 1
.end_amdhsa_kernel
""" % (NAME, nv, acc_off)
    return out

if __name__ == "__main__":
    ap = argparse.ArgumentParser()
    ap.add_argument("-o", required=True)
    ap.add_argument("--nw", type=int, default=8)
    ap.add_argument("--nsplit", type=int, default=2)
    ap.add_argument("--depth", type=int, default=2)
    ap.add_argument("--kflags", default="")
    ap.add_argument("--vflags", default="")
    ap.add_argument("--map", default="pairmajor")
    ap.add_argument("--stamps", action="store_true")
    ap.add_argument("--kacc", action="store_true")
    ap.add_argument("--lds", type=int, default=0)
    a = ap.parse_args()
    open(a.o, "w").write(gen(NW=a.nw, NSPLIT=a.nsplit, DEPTH=a.depth, KFLAGS=a.kflags, VFLAGS=a.vflags, MAP=a.map, STAMPS=a.stamps, KACC=a.kacc, LDS=a.lds))
```

```python
import sys, argparse

NAME = "standalone__tree_speculative_verify_tree_attention_over_candidate_token_tree__sampling"

HEADER = """; Kernarg layout for this problem (72 bytes, ptrs only, base s[0:1]):
"""

class Gen:
    def __init__(self):
        self.lines = []
    def e(self, s):
        self.lines.append("    " + s)
    def label(self, s):
        self.lines.append(s + ":")
    def c(self, s):
        self.lines.append("    ; " + s)
    def text(self):
        return "\n".join(self.lines) + "\n"

def vr(base, n=1):
    if n == 1:
        return "v%d" % base
    return "v[%d:%d]" % (base, base + n - 1)
def sr(base, n=1):
    if n == 1:
        return "s%d" % base
    return "s[%d:%d]" % (base, base + n - 1)

def gen(NW=8, NSPLIT=2, DEPTH=2, KFLAGS="", VFLAGS="", SKIPBR=True, MAP="pairmajor", STAMPS=False, KACC=False, LDS=None, PAT=0, TLBW=False, NOREC=False, ROTW=0, TL=False, SU=False, IL=0, XG=0):
    g = Gen()
    NPAIR = 128
    NWG = NPAIR * NSPLIT
    CHUNK = 8192 * 256 // NSPLIT
    NT = 8192 // NSPLIT // 32 // NW
    assert NT >= DEPTH
    TSTRIDE = NW * 8192
    v_tid = 0
    v_koff = 1
    v_voff = 2
    v_lane = 3
    v_m = 4
    v_l = 5
    v_t0 = 6
    v_t1 = 7
    v_al = 8
    v_mn = 9
    v_t2 = 10
    v_t3 = 11
    Q = 12
    S = Q + 16
    P = S + 8
    T = P + 4
    O = T + 12
    if KACC:
        VB = O + 32
        KB = 0
        VEND = VB + 32 * DEPTH
        XB = VB
    else:
        KB = O + 32
        VB = KB + 32 * DEPTH
        VEND = VB + 32 * DEPTH
        XB = KB
    v_tl = VEND
    nvgpr = VEND + (1 if TL else 0)
    def kr(base, n):
        return ("a[%d:%d]" if KACC else "v[%d:%d]") % (base, base + n - 1)
    s_wg = 2
    s_pair = 3
    s_split = 4
    s_wave = 5
    s_c = 6
    s_sello = 7
    SK = 8
    SV = 12
    SX = 16
    s_ko = 20
    s_ko2 = 21
    s_cnt = 22
    s_selhi = 23
    s_ptr = 24
    s_tmp = 44
    s_tmp2 = 45
    s_ex = 46

    kq, kk, kv, kkt, kvt, kmask, kout, kdbg, kws = [s_ptr + 2 * i for i in range(9)]

    g.e("s_cmp_ge_u32 s2, %d" % NWG)
    g.e("s_cbranch_scc1 L_end")
    if STAMPS:
        g.e("s_memrealtime s[48:49]")
    g.e("s_load_dwordx16 s[24:39], s[0:1], 0")
    g.e("s_load_dwordx2 s[40:41], s[0:1], 64")
    if MAP == "pairmajor":
        g.e("s_lshr_b32 s%d, s2, %d" % (s_pair, NSPLIT.bit_length() - 1))
        g.e("s_and_b32 s%d, s2, %d" % (s_split, NSPLIT - 1))
    elif MAP == "xcdmajor":
        g.e("s_and_b32 s%d, s2, 7" % s_pair)
        g.e("s_lshl_b32 s%d, s%d, 5" % (s_pair, s_pair))
        g.e("s_lshr_b32 s%d, s2, 3" % s_split)
        g.e("s_add_u32 s%d, s%d, s%d" % (s_pair, s_pair, s_split))
        g.e("s_and_b32 s%d, s%d, 1" % (s_split, s_pair))
        g.e("s_lshr_b32 s%d, s%d, 1" % (s_pair, s_pair))
    else:
        g.e("s_and_b32 s%d, s2, 127" % s_pair)
        g.e("s_lshr_b32 s%d, s2, 7" % s_split)
    g.e("v_lshrrev_b32 v%d, 6, v0" % v_t0)
    g.e("v_and_b32 v%d, 63, v0" % v_lane)
    g.e("v_readfirstlane_b32 s%d, v%d" % (s_wave, v_t0))
    g.e("v_and_b32 v%d, 3, v%d" % (v_t0, v_lane))
    g.e("v_lshlrev_b32 v%d, 10, v%d" % (v_t0, v_t0))
    g.e("v_bfe_u32 v%d, v%d, 2, 2" % (v_t1, v_lane))
    g.e("v_lshl_add_u32 v%d, v%d, 8, v%d" % (v_t0, v_t1, v_t0))
    g.e("v_lshrrev_b32 v%d, 4, v%d" % (v_t2, v_lane))
    g.e("v_lshl_add_u32 v%d, v%d, 4, v%d" % (v_koff, v_t2, v_t0))
    g.e("v_lshlrev_b32 v%d, 4, v%d" % (v_voff, v_lane))
    g.e("v_and_b32 v%d, 1, v%d" % (v_t1, v_lane))
    g.e("v_lshlrev_b32 v%d, 8, v%d" % (v_t1, v_t1))
    g.e("v_lshl_add_u32 v%d, v%d, 4, v%d" % (v_t3, v_t2, v_t1))
    g.e("s_mov_b32 s%d, 0x3e0293ee" % s_c)
    g.e("s_mov_b32 s%d, 0x05040100" % s_sello)
    g.e("s_mov_b32 s%d, 0x07060302" % s_selhi)
    g.e("s_lshl_b32 s%d, s%d, 21" % (s_tmp, s_pair))
    g.e("s_mul_i32 s%d, s%d, %d" % (s_tmp2, s_split, CHUNK))
    g.e("s_add_u32 s%d, s%d, s%d" % (s_tmp, s_tmp, s_tmp2))
    if XG:
        lg = XG.bit_length() - 1
        g.e("s_and_b32 s%d, s2, 7" % s_tmp)
        g.e("s_mul_i32 s%d, s%d, %d" % (s_tmp, s_tmp, 32 // XG))
        g.e("s_lshr_b32 s%d, s2, %d" % (s_tmp2, 3 + lg))
        g.e("s_add_u32 s%d, s%d, s%d" % (s_tmp, s_tmp, s_tmp2))
        g.e("s_lshl_b32 s%d, s%d, %d" % (s_tmp, s_tmp, 20 + lg))
        g.e("s_lshr_b32 s%d, s2, 3" % s_tmp2)
        g.e("s_and_b32 s%d, s%d, %d" % (s_tmp2, s_tmp2, XG - 1))
        g.e("s_mul_i32 s%d, s%d, %d" % (s_tmp2, s_tmp2, NW * 8192))
        g.e("s_add_u32 s%d, s%d, s%d" % (s_tmp, s_tmp, s_tmp2))
        CHUNK = XG << 20
        TSTRIDE = XG * NW * 8192
    if IL:
        g.e("s_lshl_b32 s%d, s%d, 21" % (s_tmp, s_pair))
        g.e("s_mul_i32 s%d, s%d, %d" % (s_tmp2, s_split, IL * NW * 8192))
        g.e("s_add_u32 s%d, s%d, s%d" % (s_tmp, s_tmp, s_tmp2))
        g.e("s_mov_b32 s60, 0")
        CHUNK = (2 << 20) - (NSPLIT - 1) * 0
    if PAT < 0:
        c = -PAT
        g.e("s_lshr_b32 s%d, s2, 3" % s_tmp)
        g.e("s_lshl_b32 s%d, s%d, 23" % (s_tmp, s_tmp))
        g.e("s_and_b32 s%d, s2, 7" % s_tmp2)
        g.e("s_mul_i32 s%d, s%d, %d" % (s_tmp2, s_tmp2, c * 8192))
        g.e("s_add_u32 s%d, s%d, s%d" % (s_tmp, s_tmp, s_tmp2))
        g.e("s_mov_b32 s60, 0")
        CHUNK = 8 << 20
        TSTRIDE = 8192
    if PAT > 0:
        g.e("s_lshr_b32 s%d, s2, 3" % s_tmp)
        g.e("s_lshl_b32 s%d, s%d, 23" % (s_tmp, s_tmp))
        g.e("s_and_b32 s%d, s2, 7" % s_tmp2)
        g.e("s_mul_i32 s%d, s%d, %d" % (s_tmp2, s_tmp2, PAT * 8192))
        g.e("s_add_u32 s%d, s%d, s%d" % (s_tmp, s_tmp, s_tmp2))
        g.e("s_mov_b32 s60, 0")
        CHUNK = 8 << 20
    if PAT < 0:
        g.e("s_mul_i32 s%d, s%d, %d" % (s_ko, s_wave, (8 << 20) // NW))
    else:
        g.e("s_lshl_b32 s%d, s%d, 13" % (s_ko, s_wave))
    if ROTW:
        g.e("s_mul_i32 s62, s2, %d" % (ROTW * TSTRIDE))
        g.e("s_add_u32 s%d, s%d, s62" % (s_ko, s_ko))
        g.e("s_and_b32 s%d, s%d, %d" % (s_ko, s_ko, CHUNK - 1))
    g.e("s_add_u32 s%d, s%d, 4096" % (s_ko2, s_ko))
    g.e("s_waitcnt lgkmcnt(0)")
    if SU:
        g.e("s_memrealtime s[50:51]")
    g.e("s_lshl_b32 s%d, s%d, 9" % (s_tmp2, s_pair))
    g.e("s_add_u32 s%d, s%d, s%d" % (SX, kq, s_tmp2))
    g.e("s_addc_u32 s%d, s%d, 0" % (SX + 1, kq + 1))
    g.e("s_mov_b32 s%d, 512" % (SX + 2))
    g.e("s_mov_b32 s%d, 0x00020000" % (SX + 3))
    for j in range(4):
        g.e("buffer_load_dwordx4 %s, v%d, s[%d:%d], 0 offen offset:%d" % (vr(Q + 4 * j, 4), v_t3, SX, SX + 3, 64 * j))
    g.e("s_add_u32 s%d, s%d, s%d" % (SK, kk, s_tmp))
    g.e("s_addc_u32 s%d, s%d, 0" % (SK + 1, kk + 1))
    g.e("s_mov_b32 s%d, %d" % (SK + 2, 0 if NOREC else CHUNK))
    g.e("s_mov_b32 s%d, 0x00020000" % (SK + 3))
    g.e("s_add_u32 s%d, s%d, s%d" % (SV, kv, s_tmp))
    g.e("s_addc_u32 s%d, s%d, 0" % (SV + 1, kv + 1))
    g.e("s_mov_b32 s%d, %d" % (SV + 2, 0 if NOREC else CHUNK))
    g.e("s_mov_b32 s%d, 0x00020000" % (SV + 3))

    if TLBW:
        g.e("v_mov_b32 v%d, 0" % v_t0)
        for k in range(1, 4):
            g.e("s_mov_b32 s62, %d" % (k * (2 << 20)))
            g.e("buffer_load_dword v%d, v%d, s[%d:%d], s62 offen nt" % (v_al, v_t0, SK, SK + 3))
            g.e("buffer_load_dword v%d, v%d, s[%d:%d], s62 offen nt" % (v_al, v_t0, SV, SV + 3))
    def loadK(b):
        for t in range(2):
            for j in range(4):
                g.e("buffer_load_dwordx4 %s, v%d, s[%d:%d], s%d offen offset:%d %s" % (
                    kr(KB + 32 * b + 16 * t + 4 * j, 4), v_koff, SK, SK + 3, (s_ko, s_ko2)[t], 64 * j, KFLAGS))
    def loadV(b):
        for x in range(8):
            g.e("buffer_load_dwordx4 %s, v%d, s[%d:%d], s%d offen offset:%d %s" % (
                vr(VB + 32 * b + 4 * x, 4), v_voff, SV, SV + 3, (s_ko, s_ko2)[x >> 2], 1024 * (x & 3), VFLAGS))
    def advance():
        g.e("s_add_u32 s%d, s%d, %d" % (s_ko, s_ko, TSTRIDE))
        if ROTW:
            g.e("s_and_b32 s%d, s%d, %d" % (s_ko, s_ko, CHUNK - 1))
            g.e("s_add_u32 s%d, s%d, 4096" % (s_ko2, s_ko))
        else:
            g.e("s_add_u32 s%d, s%d, %d" % (s_ko2, s_ko2, TSTRIDE))
        if IL:
            g.e("s_add_u32 s60, s60, 1")
            g.e("s_and_b32 s61, s60, %d" % (IL - 1))
            g.e("s_cmp_eq_u32 s61, 0")
            g.e("s_cselect_b32 s61, %d, 0" % ((NSPLIT - 1) * IL * NW * 8192))
            g.e("s_add_u32 s%d, s%d, s61" % (s_ko, s_ko))
            g.e("s_add_u32 s%d, s%d, s61" % (s_ko2, s_ko2))
        if PAT:
            g.e("s_add_u32 s60, s60, 1")
            g.e("s_and_b32 s61, s60, %d" % (abs(PAT) - 1))
            g.e("s_cmp_eq_u32 s61, 0")
            g.e("s_cselect_b32 s61, %d, 0" % (7 * abs(PAT) * 8192))
            g.e("s_add_u32 s%d, s%d, s61" % (s_ko, s_ko))
            g.e("s_add_u32 s%d, s%d, s61" % (s_ko2, s_ko2))

    g.e("s_or_b32 s%d, s%d, s%d" % (s_tmp2, s_wave, s_split))
    g.e("s_cmp_eq_u32 s%d, 0" % s_tmp2)
    g.e("s_cbranch_scc1 L_tree")
    for b in range(DEPTH):
        loadK(b); loadV(b); advance()
    g.e("v_mov_b32 v%d, 0xff7fffff" % v_m)
    g.e("v_mov_b32 v%d, 0" % v_l)
    for i in range(32):
        g.e("v_mov_b32 v%d, 0" % (O + i))
    g.e("s_branch L_loop_entry")
    g.label("L_tree")
    g.e("s_lshl_b32 s%d, s%d, 8" % (s_tmp2, s_pair))
    g.e("s_add_u32 s%d, s%d, s%d" % (SX, kkt, s_tmp2))
    g.e("s_addc_u32 s%d, s%d, 0" % (SX + 1, kkt + 1))
    g.e("s_mov_b32 s%d, 256" % (SX + 2))
    g.e("v_lshrrev_b32 v%d, 4, v%d" % (v_t2, v_lane))
    g.e("v_lshlrev_b32 v%d, 4, v%d" % (v_t0, v_t2))
    for j in range(4):
        g.e("buffer_load_dwordx4 %s, v%d, s[%d:%d], 0 offen offset:%d" % (vr(O + 4 * j, 4), v_t0, SX, SX + 3, 64 * j))
    g.e("s_add_u32 s%d, s%d, s%d" % (SX, kvt, s_tmp2))
    g.e("s_addc_u32 s%d, s%d, 0" % (SX + 1, kvt + 1))
    g.e("v_lshlrev_b32 v%d, 6, v%d" % (v_t0, v_t2))
    for r in range(4):
        g.e("buffer_load_dwordx4 %s, v%d, s[%d:%d], 0 offen offset:%d" % (vr(O + 16 + 4 * r, 4), v_t0, SX, SX + 3, 16 * r))
    g.e("s_lshr_b32 s%d, s%d, 4" % (s_tmp2, s_pair))
    g.e("s_lshl_b32 s%d, s%d, 1" % (s_tmp2, s_tmp2))
    g.e("s_mov_b32 s%d, s%d" % (SX, kmask))
    g.e("s_mov_b32 s%d, s%d" % (SX + 1, kmask + 1))
    g.e("s_mov_b32 s%d, 16" % (SX + 2))
    g.e("v_mov_b32 v%d, s%d" % (v_t0, s_tmp2))
    g.e("buffer_load_ushort v%d, v%d, s[%d:%d], 0 offen" % (v_t1, v_t0, SX, SX + 3))
    for b in range(DEPTH):
        loadK(b); loadV(b); advance()
    g.e("s_waitcnt vmcnt(%d)" % (16 * DEPTH))
    g.e("v_mfma_f32_16x16x32_bf16 %s, %s, %s, 0" % (vr(S, 4), vr(O, 4), vr(Q, 4)))
    for j in range(1, 4):
        g.e("v_mfma_f32_16x16x32_bf16 %s, %s, %s, %s" % (vr(S, 4), vr(O + 4 * j, 4), vr(Q + 4 * j, 4), vr(S, 4)))
    g.e("v_lshlrev_b32 v%d, 16, v%d" % (v_t1, v_t1))
    g.e("v_sub_f32 v%d, 1.0, v%d" % (v_t1, v_t1))
    g.e("v_mul_f32 v%d, 0xceabfb8f, v%d" % (v_t1, v_t1))
    tmpv = S + 4
    for i in range(16):
        g.e("v_mov_b32 v%d, v%d" % (tmpv + i, O + 16 + i))
    g.e("s_nop 4")
    g.e("v_fma_f32 v%d, v%d, s%d, v%d" % (v_m, S, s_c, v_t1))
    for i in range(8):
        for r in range(4):
            src = tmpv + 4 * r + (i >> 1)
            if i & 1:
                g.e("v_and_b32 v%d, 0xffff0000, v%d" % (O + 4 * i + r, src))
            else:
                g.e("v_lshlrev_b32 v%d, 16, v%d" % (O + 4 * i + r, src))
    g.e("v_cmp_gt_u32 vcc, 16, v%d" % v_lane)
    g.e("s_nop 1")
    g.e("v_cndmask_b32 v%d, 0, 1.0, vcc" % v_l)
    g.label("L_loop_entry")
    if STAMPS and not SU:
        g.e("s_waitcnt vmcnt(%d)" % (16 * DEPTH - 8))
        g.e("s_memrealtime s[50:51]")
    if SU:
        g.e("s_memrealtime s[56:57]")
        g.e("s_waitcnt vmcnt(%d)" % (16 * DEPTH - 8))
        g.e("s_memrealtime s[52:53]")
        g.e("s_waitcnt vmcnt(0)")
        g.e("s_memrealtime s[54:55]")

    def body(b, pref, wk, wv, tag):
        g.e("s_waitcnt vmcnt(%d)" % wk)
        for j in range(4):
            for t in range(2):
                c = "0" if j == 0 else vr(S + 4 * t, 4)
                g.e("v_mfma_f32_16x16x32_bf16 %s, %s, %s, %s" % (vr(S + 4 * t, 4), kr(KB + 32 * b + 16 * t + 4 * j, 4), vr(Q + 4 * j, 4), c))
        if pref:
            loadK(b)
        else:
            g.e("s_nop 7")
        g.e("v_max3_f32 v%d, v%d, v%d, v%d" % (v_t0, S, S + 1, S + 2))
        g.e("v_max3_f32 v%d, v%d, v%d, v%d" % (v_t1, S + 3, S + 4, S + 5))
        g.e("v_max3_f32 v%d, v%d, v%d, v%d" % (v_t0, v_t0, S + 6, S + 7))
        g.e("v_max_f32 v%d, v%d, v%d" % (v_t0, v_t0, v_t1))
        g.e("v_mov_b32 v%d, v%d" % (v_t1, v_t0))
        g.e("s_nop 1")
        g.e("v_permlane32_swap_b32 v%d, v%d" % (v_t0, v_t1))
        g.e("v_max_f32 v%d, v%d, v%d" % (v_t0, v_t0, v_t1))
        g.e("v_mov_b32 v%d, v%d" % (v_t1, v_t0))
        g.e("s_nop 1")
        g.e("v_permlane16_swap_b32 v%d, v%d" % (v_t0, v_t1))
        g.e("v_max_f32 v%d, v%d, v%d" % (v_t0, v_t0, v_t1))
        g.e("v_mul_f32 v%d, s%d, v%d" % (v_t0, s_c, v_t0))
        if SKIPBR:
            g.e("v_cmp_gt_f32 vcc, v%d, v%d" % (v_t0, v_m))
            g.e("s_cbranch_vccz L_skip_%s" % tag)
        g.e("v_max_f32 v%d, v%d, v%d" % (v_mn, v_m, v_t0))
        g.e("v_sub_f32 v%d, v%d, v%d" % (v_t1, v_m, v_mn))
        g.e("v_exp_f32 v%d, v%d" % (v_al, v_t1))
        g.e("v_mov_b32 v%d, v%d" % (v_m, v_mn))
        g.e("v_mul_f32 v%d, v%d, v%d" % (v_l, v_l, v_al))
        for i in range(32):
            g.e("v_mul_f32 v%d, v%d, v%d" % (O + i, O + i, v_al))
        if SKIPBR:
            g.label("L_skip_%s" % tag)
        for i in range(8):
            g.e("v_fma_f32 v%d, v%d, s%d, -v%d" % (S + i, S + i, s_c, v_m))
        for i in range(8):
            g.e("v_exp_f32 v%d, v%d" % (S + i, S + i))
        g.e("s_nop 0")
        for y in range(4):
            g.e("v_cvt_pk_bf16_f32 v%d, v%d, v%d" % (P + y, S + 2 * y, S + 2 * y + 1))
        g.e("v_add_f32 v%d, v%d, v%d" % (v_t0, S, S + 1))
        g.e("v_add_f32 v%d, v%d, v%d" % (v_t1, S + 2, S + 3))
        g.e("v_add_f32 v%d, v%d, v%d" % (v_t2, S + 4, S + 5))
        g.e("v_add_f32 v%d, v%d, v%d" % (v_t3, S + 6, S + 7))
        g.e("v_add_f32 v%d, v%d, v%d" % (v_t0, v_t0, v_t1))
        g.e("v_add_f32 v%d, v%d, v%d" % (v_t2, v_t2, v_t3))
        g.e("v_add_f32 v%d, v%d, v%d" % (v_t0, v_t0, v_t2))
        g.e("v_add_f32 v%d, v%d, v%d" % (v_l, v_l, v_t0))
        g.e("s_waitcnt vmcnt(%d)" % wv)
        def perm(i):
            sel = s_selhi if (i & 1) else s_sello
            for y in range(4):
                lo = VB + 32 * b + 4 * (2 * y) + (i >> 1)
                hi = VB + 32 * b + 4 * (2 * y + 1) + (i >> 1)
                g.e("v_perm_b32 v%d, v%d, v%d, s%d" % (T + 4 * (i % 3) + y, hi, lo, sel))
        def pv(i):
            g.e("v_mfma_f32_16x16x32_bf16 %s, %s, %s, %s" % (vr(O + 4 * i, 4), vr(T + 4 * (i % 3), 4), vr(P, 4), vr(O + 4 * i, 4)))
        perm(0)
        for i in range(8):
            if i + 1 < 8:
                perm(i + 1)
            else:
                g.e("s_nop 1")
            pv(i)
        if pref:
            loadV(b)
            advance()

    NLOOP = (NT - DEPTH) // DEPTH
    W = 16 * DEPTH - 8
    if NLOOP > 0:
        g.e("s_mov_b32 s%d, %d" % (s_cnt, NLOOP))
        g.label("L_loop")
        for b in range(DEPTH):
            body(b, True, W, W, "m%d" % b)
        if TL:
            g.e("s_memrealtime s[58:59]")
            g.e("s_waitcnt lgkmcnt(0)")
            g.e("s_and_b32 m0, s%d, 63" % s_cnt)
            g.e("s_nop 1")
            g.e("v_writelane_b32 v%d, s58, m0" % v_tl)
        g.e("s_sub_u32 s%d, s%d, 1" % (s_cnt, s_cnt))
        g.e("s_cmp_lg_u32 s%d, 0" % s_cnt)
        g.e("s_cbranch_scc1 L_loop")
    R = (NT - DEPTH) % DEPTH
    q = []
    for b in range(DEPTH):
        q += [("K", b), ("V", b)]
    for k in range(R + DEPTH):
        b = k % DEPTH
        pref = k < R
        i = q.index(("K", b))
        wk = 8 * (len(q) - 1 - i)
        q = q[i + 1:]
        if pref:
            q.append(("K", b))
        i = q.index(("V", b))
        wv = 8 * (len(q) - 1 - i)
        q = q[i + 1:]
        if pref:
            q.append(("V", b))
        body(b, pref, wk, wv, "e%d" % k)

    if TL:
        g.e("s_memrealtime s[58:59]")
        g.e("s_waitcnt lgkmcnt(0)")
        g.e("v_writelane_b32 v%d, s58, 0" % v_tl)
        g.e("v_writelane_b32 v%d, s48, 63" % v_tl)
        g.e("s_mul_i32 s58, s2, %d" % NW)
        g.e("s_add_u32 s58, s58, s%d" % s_wave)
        g.e("s_lshl_b32 s58, s58, 8")
        g.e("s_add_u32 s58, s58, 0x20100000")
        g.e("s_add_u32 s16, s40, s58")
        g.e("s_addc_u32 s17, s41, 0")
        g.e("s_mov_b32 s18, 256")
        g.e("s_mov_b32 s19, 0x00020000")
        g.e("v_lshlrev_b32 v%d, 2, v%d" % (v_t0, v_lane))
        g.e("buffer_store_dword v%d, v%d, s[16:19], 0 offen" % (v_tl, v_t0))
    g.e("v_mov_b32 v%d, v%d" % (v_t1, v_l))
    g.e("s_nop 1")
    g.e("v_permlane32_swap_b32 v%d, v%d" % (v_l, v_t1))
    g.e("v_add_f32 v%d, v%d, v%d" % (v_l, v_l, v_t1))
    g.e("v_mov_b32 v%d, v%d" % (v_t1, v_l))
    g.e("s_nop 1")
    g.e("v_permlane16_swap_b32 v%d, v%d" % (v_l, v_t1))
    g.e("v_add_f32 v%d, v%d, v%d" % (v_l, v_l, v_t1))
    g.e("v_and_b32 v%d, 1, v%d" % (v_t0, v_lane))
    g.e("v_lshrrev_b32 v%d, 4, v%d" % (v_t1, v_lane))
    g.e("v_lshlrev_b32 v%d, 9, v%d" % (v_t2, v_t0))
    g.e("v_lshl_add_u32 v%d, v%d, 7, v%d" % (v_t2, v_t1, v_t2))
    g.e("s_lshl_b32 s%d, s%d, 10" % (s_tmp, s_wave))
    g.e("v_add_u32 v%d, s%d, v%d" % (v_t2, s_tmp, v_t2))
    g.e("s_lshl_b32 s%d, s%d, 4" % (s_tmp, s_wave))
    g.e("s_add_u32 s%d, s%d, %d" % (s_tmp, s_tmp, NW * 1024))
    g.e("v_lshlrev_b32 v%d, 3, v%d" % (v_t3, v_t0))
    g.e("v_add_u32 v%d, s%d, v%d" % (v_t3, s_tmp, v_t3))
    g.e("s_mov_b32 exec_lo, 0x00030003")
    g.e("s_mov_b32 exec_hi, 0x00030003")
    g.e("s_nop 4")
    for i in range(8):
        g.e("ds_write_b128 v%d, %s offset:%d" % (v_t2, vr(O + 4 * i, 4), 16 * i))
    g.e("ds_write_b64 v%d, %s" % (v_t3, vr(v_m, 2)))
    g.e("s_mov_b64 exec, -1")
    g.e("s_waitcnt lgkmcnt(0)")
    g.e("s_barrier")
    g.e("s_cmp_lg_u32 s%d, 0" % s_wave)
    g.e("s_cbranch_scc1 L_end")
    if STAMPS and not SU:
        g.e("s_memrealtime s[52:53]")
    A = XB
    ML = XB + 4 * NW
    if ML & 1: ML += 1
    g.e("v_lshlrev_b32 v%d, 4, v%d" % (v_t0, v_lane))
    g.e("v_lshrrev_b32 v%d, 5, v%d" % (v_t1, v_lane))
    g.e("v_lshlrev_b32 v%d, 3, v%d" % (v_t1, v_t1))
    for w in range(NW):
        g.e("ds_read_b64 %s, v%d offset:%d" % (vr(ML + 2 * w, 2), v_t1, NW * 1024 + 16 * w))
    for w in range(NW):
        g.e("ds_read_b128 %s, v%d offset:%d" % (vr(A + 4 * w, 4), v_t0, 1024 * w))
    g.e("s_waitcnt lgkmcnt(0)")
    g.e("v_mov_b32 v%d, v%d" % (v_m, ML))
    for w in range(1, NW):
        g.e("v_max_f32 v%d, v%d, v%d" % (v_m, v_m, ML + 2 * w))
    for w in range(NW):
        g.e("v_sub_f32 v%d, v%d, v%d" % (ML + 2 * w, ML + 2 * w, v_m))
    for w in range(NW):
        g.e("v_exp_f32 v%d, v%d" % (ML + 2 * w, ML + 2 * w))
    g.e("s_nop 0")
    g.e("v_mul_f32 v%d, v%d, v%d" % (v_l, ML, ML + 1))
    for r in range(4):
        g.e("v_mul_f32 v%d, v%d, v%d" % (O + r, A + r, ML))
    for w in range(1, NW):
        g.e("v_fma_f32 v%d, v%d, v%d, v%d" % (v_l, ML + 2 * w, ML + 2 * w + 1, v_l))
        for r in range(4):
            g.e("v_fma_f32 v%d, v%d, v%d, v%d" % (O + r, A + 4 * w + r, ML + 2 * w, O + r))
    g.e("s_mul_i32 s%d, s%d, %d" % (s_tmp, s_pair, NSPLIT * 2048))
    g.e("s_add_u32 s%d, s%d, s%d" % (SX, kws, s_tmp))
    g.e("s_addc_u32 s%d, s%d, 0" % (SX + 1, kws + 1))
    g.e("s_mov_b32 s%d, %d" % (SX + 2, NSPLIT * 2048))
    g.e("s_mov_b32 s%d, 0x00020000" % (SX + 3))
    g.e("s_lshl_b32 s%d, s%d, 11" % (s_tmp, s_split))
    g.e("v_lshlrev_b32 v%d, 3, v%d" % (v_t1, v_lane))
    g.e("buffer_store_dwordx4 %s, v%d, s[%d:%d], s%d offen sc0 sc1" % (vr(O, 4), v_t0, SX, SX + 3, s_tmp))
    g.e("buffer_store_dwordx2 v[%d:%d], v%d, s[%d:%d], s%d offen offset:1024 sc0 sc1" % (v_m, v_m + 1, v_t1, SX, SX + 3, s_tmp))
    g.e("s_waitcnt vmcnt(0)")
    g.e("s_mov_b32 s%d, s%d" % (SK, kdbg))
    g.e("s_mov_b32 s%d, s%d" % (SK + 1, kdbg + 1))
    g.e("s_mov_b32 s%d, 256" % (SK + 2))
    g.e("s_mov_b32 s%d, 0x00020000" % (SK + 3))
    g.e("s_and_b32 s%d, s%d, 1" % (s_tmp, s_pair))
    g.e("s_lshl_b32 s%d, s%d, 4" % (s_tmp, s_tmp))
    g.e("s_lshl_b32 s%d, 1, s%d" % (s_tmp2, s_tmp))
    g.e("v_mov_b32 v%d, s%d" % (v_t2, s_tmp2))
    g.e("s_lshr_b32 s%d, s%d, 1" % (s_tmp2, s_pair))
    g.e("s_lshl_b32 s%d, s%d, 2" % (s_tmp2, s_tmp2))
    g.e("v_mov_b32 v%d, s%d" % (v_t3, s_tmp2))
    g.e("s_mov_b64 exec, 1")
    g.e("buffer_atomic_add v%d, v%d, s[%d:%d], 0 offen sc0" % (v_t2, v_t3, SK, SK + 3))
    g.e("s_waitcnt vmcnt(0)")
    g.e("v_readfirstlane_b32 s%d, v%d" % (s_tmp2, v_t2))
    g.e("s_mov_b64 exec, -1")
    g.e("s_lshr_b32 s%d, s%d, s%d" % (s_tmp2, s_tmp2, s_tmp))
    g.e("s_and_b32 s%d, s%d, 0xffff" % (s_tmp2, s_tmp2))
    g.e("s_cmp_lg_u32 s%d, %d" % (s_tmp2, NSPLIT - 1))
    g.e("s_cbranch_scc1 L_fin")
    A = XB
    ML = XB + 4 * NSPLIT
    for sp in range(NSPLIT):
        g.e("s_mov_b32 s%d, %d" % (s_tmp, sp * 2048))
        g.e("buffer_load_dwordx4 %s, v%d, s[%d:%d], s%d offen sc0 sc1" % (vr(A + 4 * sp, 4), v_t0, SX, SX + 3, s_tmp))
        g.e("buffer_load_dwordx2 %s, v%d, s[%d:%d], s%d offen offset:1024 sc0 sc1" % (vr(ML + 2 * sp, 2), v_t1, SX, SX + 3, s_tmp))
    g.e("s_waitcnt vmcnt(0)")
    g.e("v_mov_b32 v%d, v%d" % (v_m, ML))
    for w in range(1, NSPLIT):
        g.e("v_max_f32 v%d, v%d, v%d" % (v_m, v_m, ML + 2 * w))
    for w in range(NSPLIT):
        g.e("v_sub_f32 v%d, v%d, v%d" % (ML + 2 * w, ML + 2 * w, v_m))
    for w in range(NSPLIT):
        g.e("v_exp_f32 v%d, v%d" % (ML + 2 * w, ML + 2 * w))
    g.e("s_nop 0")
    g.e("v_mul_f32 v%d, v%d, v%d" % (v_l, ML, ML + 1))
    for r in range(4):
        g.e("v_mul_f32 v%d, v%d, v%d" % (O + r, A + r, ML))
    for w in range(1, NSPLIT):
        g.e("v_fma_f32 v%d, v%d, v%d, v%d" % (v_l, ML + 2 * w, ML + 2 * w + 1, v_l))
        for r in range(4):
            g.e("v_fma_f32 v%d, v%d, v%d, v%d" % (O + r, A + 4 * w + r, ML + 2 * w, O + r))
    g.e("v_rcp_f32 v%d, v%d" % (v_l, v_l))
    g.e("s_nop 0")
    for r in range(4):
        g.e("v_mul_f32 v%d, v%d, v%d" % (O + r, O + r, v_l))
    g.e("v_cvt_pk_bf16_f32 v%d, v%d, v%d" % (P, O, O + 1))
    g.e("v_cvt_pk_bf16_f32 v%d, v%d, v%d" % (P + 1, O + 2, O + 3))
    g.e("s_lshl_b32 s%d, s%d, 9" % (s_tmp, s_pair))
    g.e("s_add_u32 s%d, s%d, s%d" % (SK, kout, s_tmp))
    g.e("s_addc_u32 s%d, s%d, 0" % (SK + 1, kout + 1))
    g.e("s_mov_b32 s%d, 512" % (SK + 2))
    g.e("v_lshrrev_b32 v%d, 3, v%d" % (v_t0, v_lane))
    g.e("v_lshlrev_b32 v%d, 6, v%d" % (v_t0, v_t0))
    g.e("v_and_b32 v%d, 7, v%d" % (v_t1, v_lane))
    g.e("v_lshl_add_u32 v%d, v%d, 1, v%d" % (v_t0, v_t1, v_t0))
    g.e("buffer_store_short v%d, v%d, s[%d:%d], 0 offen" % (P, v_t0, SK, SK + 3))
    g.e("buffer_store_short_d16_hi v%d, v%d, s[%d:%d], 0 offen offset:16" % (P, v_t0, SK, SK + 3))
    g.e("buffer_store_short v%d, v%d, s[%d:%d], 0 offen offset:32" % (P + 1, v_t0, SK, SK + 3))
    g.e("buffer_store_short_d16_hi v%d, v%d, s[%d:%d], 0 offen offset:48" % (P + 1, v_t0, SK, SK + 3))
    g.label("L_fin")
    if STAMPS:
        g.e("s_waitcnt vmcnt(0)")
        if not SU:
            g.e("s_memrealtime s[54:55]")
            g.e("s_getreg_b32 s56, hwreg(HW_REG_XCC_ID)")
            g.e("s_getreg_b32 s57, hwreg(HW_REG_HW_ID)")
        g.e("s_lshl_b32 s44, s2, 6")
        g.e("s_add_u32 s44, s44, 0x20000000")
        g.e("s_add_u32 s16, s40, s44")
        g.e("s_addc_u32 s17, s41, 0")
        g.e("s_mov_b32 s18, 64")
        g.e("s_mov_b32 s19, 0x00020000")
        g.e("s_waitcnt lgkmcnt(0)")
        for i in range(10):
            g.e("v_mov_b32 v%d, s%d" % (12 + i, 48 + i))
        g.e("v_mov_b32 v10, 0")
        g.e("s_mov_b64 exec, 1")
        g.e("buffer_store_dwordx4 v[12:15], v10, s[16:19], 0 offen")
        g.e("buffer_store_dwordx4 v[16:19], v10, s[16:19], 0 offen offset:16")
        g.e("buffer_store_dwordx2 v[20:21], v10, s[16:19], 0 offen offset:32")
    g.label("L_end")
    g.e("s_endpgm")

    lds = NW * 1024 + NW * 16
    if LDS: lds = max(lds, LDS)
    nv = (nvgpr + 7) // 8 * 8
    acc_off = nv
    if KACC: nv = nv + 32 * DEPTH
    out = HEADER
    out += "; @launch grid=(%d,1,1) block=(%d,1,1) lds=%d\n" % (NWG, NW * 64, lds)
    out += '.amdgcn_target "amdgcn-amd-amdhsa--gfx950"\n.text\n.globl %s_kernel\n.p2align 8\n.type %s_kernel,@function\n%s_kernel:\n' % (NAME, NAME, NAME)
    out += g.text()
    out += """.section .rodata,"a"
.p2align 6
.amdhsa_kernel %s_kernel
  .amdhsa_next_free_vgpr %d
  .amdhsa_next_free_sgpr 64
  .amdhsa_accum_offset %d
  .amdhsa_group_segment_fixed_size 0
  .amdhsa_kernarg_size 72
  .amdhsa_user_sgpr_count 2
  .amdhsa_user_sgpr_kernarg_segment_ptr 1
  .amdhsa_system_sgpr_workgroup_id_x 1
.end_amdhsa_kernel
""" % (NAME, nv, acc_off)
    return out

if __name__ == "__main__":
    ap = argparse.ArgumentParser()
    ap.add_argument("-o", required=True)
    ap.add_argument("--nw", type=int, default=8)
    ap.add_argument("--nsplit", type=int, default=2)
    ap.add_argument("--depth", type=int, default=2)
    ap.add_argument("--kflags", default="")
    ap.add_argument("--vflags", default="")
    ap.add_argument("--map", default="pairmajor")
    ap.add_argument("--stamps", action="store_true")
    ap.add_argument("--kacc", action="store_true")
    ap.add_argument("--xg", type=int, default=0)
    ap.add_argument("--il", type=int, default=0)
    ap.add_argument("--su", action="store_true")
    ap.add_argument("--tl", action="store_true")
    ap.add_argument("--rotw", type=int, default=0)
    ap.add_argument("--norec", action="store_true")
    ap.add_argument("--tlbw", action="store_true")
    ap.add_argument("--pat", type=int, default=0)
    ap.add_argument("--lds", type=int, default=0)
    a = ap.parse_args()
    open(a.o, "w").write(gen(NW=a.nw, NSPLIT=a.nsplit, DEPTH=a.depth, KFLAGS=a.kflags, VFLAGS=a.vflags, MAP=a.map, STAMPS=a.stamps, KACC=a.kacc, LDS=a.lds, PAT=a.pat, TLBW=a.tlbw, NOREC=a.norec, ROTW=a.rotw, TL=a.tl, SU=a.su, IL=a.il, XG=a.xg))
```

```python
import sys, argparse
from gen1 import NAME, HEADER, Gen, vr, sr

def gen(NW=2, D=2, IL=2, MAP="splitmajor", KFLAGS="nt", VFLAGS="nt", STAMPS=False, LDS=90000, KACC=False, QFIRST=False, SKIPBR=True):
    g = Gen()
    e = g.e
    NSPLIT = 2
    NWG = 256
    NT = 8192 // NSPLIT // 32 // NW
    TSTRIDE = NW * 8192
    JUMP = (NSPLIT - 1) * IL * NW * 8192
    TW = 1 if NW > 1 else 0
    v_koff = 1
    v_voff = 2
    v_lane = 3
    v_m = 4
    v_l = 5
    v_t0 = 6
    v_t1 = 7
    v_al = 8
    v_mn = 9
    v_t2 = 10
    v_t3 = 11
    v_arr = 12
    v_aoff = 13
    PO = 14
    PML = 18
    Q = 20
    S = Q + 16
    P = S + 8
    T = P + 4
    O = T + 12
    if KACC:
        VB = O + 32
        KB = 0
        VEND = VB + 32 * D
        XB = VB
    else:
        KB = O + 32
        VB = KB + 32 * D
        VEND = VB + 32 * D
        XB = KB
    def kr(base, n):
        return ("a[%d:%d]" if KACC else "v[%d:%d]") % (base, base + n - 1)
    s_pair = 3
    s_split = 4
    s_wave = 5
    s_c = 6
    s_sello = 7
    SK = 8
    SV = 12
    SX = 16
    s_ko = 20
    s_ko2 = 21
    s_cnt = 22
    s_selhi = 23
    s_ptr = 24
    s_tmp = 44
    s_tmp2 = 45
    s_ilc = 46
    s_ilj = 47
    SP = 56
    s_role = 60
    s_jA = 62
    s_jB = 63
    s_shift = 61
    SD = 64
    kq, kk, kv, kkt, kvt, kmask, kout, kdbg, kws = [s_ptr + 2 * i for i in range(9)]
    NP = NW + 1
    LML = NP * 1024

    e("s_cmp_ge_u32 s2, %d" % NWG)
    e("s_cbranch_scc1 L_end")
    e("s_load_dwordx16 s[24:39], s[0:1], 0")
    e("s_load_dwordx2 s[40:41], s[0:1], 64")
    if STAMPS:
        e("s_memrealtime s[48:49]")
    if MAP == "pairmajor":
        e("s_lshr_b32 s%d, s2, 1" % s_pair)
        e("s_and_b32 s%d, s2, 1" % s_split)
    else:
        e("s_and_b32 s%d, s2, 127" % s_pair)
        e("s_lshr_b32 s%d, s2, 7" % s_split)
    e("v_lshrrev_b32 v%d, 6, v0" % v_t0)
    e("v_and_b32 v%d, 63, v0" % v_lane)
    e("v_readfirstlane_b32 s%d, v%d" % (s_wave, v_t0))
    e("v_and_b32 v%d, 3, v%d" % (v_t0, v_lane))
    e("v_lshlrev_b32 v%d, 10, v%d" % (v_t0, v_t0))
    e("v_bfe_u32 v%d, v%d, 2, 2" % (v_t1, v_lane))
    e("v_lshl_add_u32 v%d, v%d, 8, v%d" % (v_t0, v_t1, v_t0))
    e("v_lshrrev_b32 v%d, 4, v%d" % (v_t2, v_lane))
    e("v_lshl_add_u32 v%d, v%d, 4, v%d" % (v_koff, v_t2, v_t0))
    e("v_lshlrev_b32 v%d, 4, v%d" % (v_voff, v_lane))
    e("v_and_b32 v%d, 1, v%d" % (v_t1, v_lane))
    e("v_lshlrev_b32 v%d, 8, v%d" % (v_t1, v_t1))
    e("v_lshl_add_u32 v%d, v%d, 4, v%d" % (v_t3, v_t2, v_t1))
    e("s_lshl_b32 s%d, s%d, 21" % (s_tmp, s_pair))
    e("s_mul_i32 s%d, s%d, %d" % (s_tmp2, s_split, IL * NW * 8192))
    e("s_add_u32 s%d, s%d, s%d" % (s_tmp, s_tmp, s_tmp2))
    e("s_lshl_b32 s%d, s%d, 13" % (s_ko, s_wave))
    e("s_add_u32 s%d, s%d, 4096" % (s_ko2, s_ko))
    e("s_mov_b32 s%d, 0" % s_ilc)
    e("s_mov_b32 s%d, %d" % (s_jA, TSTRIDE + JUMP))
    e("s_mov_b32 s%d, %d" % (s_jB, TSTRIDE))
    e("s_lshl_b32 s%d, s%d, 9" % (s_tmp2, s_pair))
    e("s_mov_b32 s%d, 0x00200000" % (SK + 2))
    e("s_mov_b32 s%d, 0x00020000" % (SK + 3))
    e("s_mov_b32 s%d, 0x00200000" % (SV + 2))
    e("s_mov_b32 s%d, 0x00020000" % (SV + 3))
    e("s_mov_b32 s%d, 512" % (SX + 2))
    e("s_mov_b32 s%d, 0x00020000" % (SX + 3))
    if NW > 1:
        e("s_xor_b32 s%d, s%d, %d" % (s_role, s_wave, TW))
        e("s_or_b32 s%d, s%d, s%d" % (s_role, s_role, s_split))
    else:
        e("s_mov_b32 s%d, s%d" % (s_role, s_split))
    e("s_waitcnt lgkmcnt(0)")
    e("s_add_u32 s%d, s%d, s%d" % (SK, kk, s_tmp))
    e("s_addc_u32 s%d, s%d, 0" % (SK + 1, kk + 1))
    e("s_add_u32 s%d, s%d, s%d" % (SV, kv, s_tmp))
    e("s_addc_u32 s%d, s%d, 0" % (SV + 1, kv + 1))
    e("s_add_u32 s%d, s%d, s%d" % (SX, kq, s_tmp2))
    e("s_addc_u32 s%d, s%d, 0" % (SX + 1, kq + 1))

    def loadK(b):
        for t in range(2):
            for j in range(4):
                e("buffer_load_dwordx4 %s, v%d, s[%d:%d], s%d offen offset:%d %s" % (
                    kr(KB + 32 * b + 16 * t + 4 * j, 4), v_koff, SK, SK + 3, (s_ko, s_ko2)[t], 64 * j, KFLAGS))
    def loadV(b):
        for x in range(8):
            e("buffer_load_dwordx4 %s, v%d, s[%d:%d], s%d offen offset:%d %s" % (
                vr(VB + 32 * b + 4 * x, 4), v_voff, SV, SV + 3, (s_ko, s_ko2)[x >> 2], 1024 * (x & 3), VFLAGS))
    def loadQ():
        for j in range(4):
            e("buffer_load_dwordx4 %s, v%d, s[%d:%d], 0 offen offset:%d" % (vr(Q + 4 * j, 4), v_t3, SX, SX + 3, 64 * j))
    def advance():
        e("s_add_u32 s%d, s%d, 1" % (s_ilc, s_ilc))
        e("s_and_b32 s%d, s%d, %d" % (s_ilj, s_ilc, IL - 1))
        e("s_cmp_eq_u32 s%d, 0" % s_ilj)
        e("s_cselect_b32 s%d, s%d, s%d" % (s_ilj, s_jA, s_jB))
        e("s_add_u32 s%d, s%d, s%d" % (s_ko, s_ko, s_ilj))
        e("s_add_u32 s%d, s%d, 4096" % (s_ko2, s_ko))

    e("s_cmp_eq_u32 s%d, 0" % s_role)
    e("s_cbranch_scc1 L_tree")
    g.label("L_tree_ret")
    if QFIRST:
        loadQ(); loadK(0)
    else:
        loadK(0); loadQ()
    loadV(0); advance()
    for b in range(1, D):
        loadK(b); loadV(b); advance()
    e("s_mov_b32 s%d, 0x3e0293ee" % s_c)
    e("s_mov_b32 s%d, 0x05040100" % s_sello)
    e("s_mov_b32 s%d, 0x07060302" % s_selhi)
    e("v_mov_b32 v%d, 0xff7fffff" % v_m)
    e("v_mov_b32 v%d, 0" % v_l)
    for i in range(32):
        e("v_mov_b32 v%d, 0" % (O + i))
    e("s_lshl_b32 s%d, s%d, 12" % (s_tmp, s_pair))
    e("s_add_u32 s%d, s%d, s%d" % (SP, kws, s_tmp))
    e("s_addc_u32 s%d, s%d, 0" % (SP + 1, kws + 1))
    e("s_mov_b32 s%d, 4096" % (SP + 2))
    e("s_mov_b32 s%d, 0x00020000" % (SP + 3))
    e("s_cmp_lg_u32 s%d, 0" % s_wave)
    e("s_cbranch_scc1 L_noclear")
    e("v_cmp_eq_u32 vcc, 0, v%d" % v_lane)
    e("v_mov_b32 v%d, 0x7ffffff0" % v_t0)
    for i in range(4):
        e("v_mov_b32 v%d, -1" % (T + i))
    e("v_cndmask_b32 v%d, v%d, 0, vcc" % (v_aoff, v_t0))
    e("s_lshl_b32 s%d, s%d, 11" % (s_tmp, s_split))
    e("v_add_u32 v%d, 1024, v%d" % (v_t0, v_aoff))
    e("buffer_store_dwordx4 %s, v%d, s[%d:%d], s%d offen sc0 sc1" % (vr(T, 4), v_voff, SP, SP + 3, s_tmp))
    e("buffer_store_dwordx4 %s, v%d, s[%d:%d], s%d offen sc0 sc1" % (vr(T, 4), v_t0, SP, SP + 3, s_tmp))
    e("s_mov_b32 s%d, s%d" % (SD, kdbg))
    e("s_mov_b32 s%d, s%d" % (SD + 1, kdbg + 1))
    e("s_mov_b32 s%d, 256" % (SD + 2))
    e("s_mov_b32 s%d, 0x00020000" % (SD + 3))
    g.label("L_noclear")
    if STAMPS:
        e("s_waitcnt vmcnt(%d)" % (16 * D - 8))
        e("s_memrealtime s[50:51]")

    def body(b, pref, wk, wv, tag):
        e("s_waitcnt vmcnt(%d)" % wk)
        for j in range(4):
            for t in range(2):
                c = "0" if j == 0 else vr(S + 4 * t, 4)
                e("v_mfma_f32_16x16x32_bf16 %s, %s, %s, %s" % (vr(S + 4 * t, 4), kr(KB + 32 * b + 16 * t + 4 * j, 4), vr(Q + 4 * j, 4), c))
        if pref:
            loadK(b)
        else:
            e("s_nop 7")
        e("v_max3_f32 v%d, v%d, v%d, v%d" % (v_t0, S, S + 1, S + 2))
        e("v_max3_f32 v%d, v%d, v%d, v%d" % (v_t1, S + 3, S + 4, S + 5))
        e("v_max3_f32 v%d, v%d, v%d, v%d" % (v_t0, v_t0, S + 6, S + 7))
        e("v_max_f32 v%d, v%d, v%d" % (v_t0, v_t0, v_t1))
        e("v_mov_b32 v%d, v%d" % (v_t1, v_t0))
        e("s_nop 1")
        e("v_permlane32_swap_b32 v%d, v%d" % (v_t0, v_t1))
        e("v_max_f32 v%d, v%d, v%d" % (v_t0, v_t0, v_t1))
        e("v_mov_b32 v%d, v%d" % (v_t1, v_t0))
        e("s_nop 1")
        e("v_permlane16_swap_b32 v%d, v%d" % (v_t0, v_t1))
        e("v_max_f32 v%d, v%d, v%d" % (v_t0, v_t0, v_t1))
        e("v_mul_f32 v%d, s%d, v%d" % (v_t0, s_c, v_t0))
        if SKIPBR:
            e("v_cmp_gt_f32 vcc, v%d, v%d" % (v_t0, v_m))
            e("s_cbranch_vccz L_skip_%s" % tag)
        e("v_max_f32 v%d, v%d, v%d" % (v_mn, v_m, v_t0))
        e("v_sub_f32 v%d, v%d, v%d" % (v_t1, v_m, v_mn))
        e("v_exp_f32 v%d, v%d" % (v_al, v_t1))
        e("v_mov_b32 v%d, v%d" % (v_m, v_mn))
        e("v_mul_f32 v%d, v%d, v%d" % (v_l, v_l, v_al))
        for i in range(32):
            e("v_mul_f32 v%d, v%d, v%d" % (O + i, O + i, v_al))
        if SKIPBR:
            g.label("L_skip_%s" % tag)
        for i in range(8):
            e("v_fma_f32 v%d, v%d, s%d, -v%d" % (S + i, S + i, s_c, v_m))
        for i in range(8):
            e("v_exp_f32 v%d, v%d" % (S + i, S + i))
        e("s_nop 0")
        for y in range(4):
            e("v_cvt_pk_bf16_f32 v%d, v%d, v%d" % (P + y, S + 2 * y, S + 2 * y + 1))
        e("v_add_f32 v%d, v%d, v%d" % (v_t0, S, S + 1))
        e("v_add_f32 v%d, v%d, v%d" % (v_t1, S + 2, S + 3))
        e("v_add_f32 v%d, v%d, v%d" % (v_t2, S + 4, S + 5))
        e("v_add_f32 v%d, v%d, v%d" % (v_t3, S + 6, S + 7))
        e("v_add_f32 v%d, v%d, v%d" % (v_t0, v_t0, v_t1))
        e("v_add_f32 v%d, v%d, v%d" % (v_t2, v_t2, v_t3))
        e("v_add_f32 v%d, v%d, v%d" % (v_t0, v_t0, v_t2))
        e("v_add_f32 v%d, v%d, v%d" % (v_l, v_l, v_t0))
        e("s_waitcnt vmcnt(%d)" % wv)
        def perm(i):
            sel = s_selhi if (i & 1) else s_sello
            for y in range(4):
                lo = VB + 32 * b + 4 * (2 * y) + (i >> 1)
                hi = VB + 32 * b + 4 * (2 * y + 1) + (i >> 1)
                e("v_perm_b32 v%d, v%d, v%d, s%d" % (T + 4 * (i % 3) + y, hi, lo, sel))
        def pv(i):
            e("v_mfma_f32_16x16x32_bf16 %s, %s, %s, %s" % (vr(O + 4 * i, 4), vr(T + 4 * (i % 3), 4), vr(P, 4), vr(O + 4 * i, 4)))
        perm(0)
        for i in range(8):
            if i + 1 < 8:
                perm(i + 1)
            else:
                e("s_nop 1")
            pv(i)
        if pref:
            loadV(b)
            advance()

    NLOOP = (NT - D) // D
    R = (NT - D) % D
    W = 16 * D - 8
    e("s_mov_b32 s%d, %d" % (s_cnt, NLOOP))
    g.label("L_loop")
    for b in range(D):
        body(b, True, W, W, "m%d" % b)
    e("s_sub_u32 s%d, s%d, 1" % (s_cnt, s_cnt))
    e("s_cmp_lg_u32 s%d, 0" % s_cnt)
    e("s_cbranch_scc1 L_loop")
    def arrival():
        e("s_cmp_lg_u32 s%d, 0" % s_wave)
        e("s_cbranch_scc1 L_noarr")
        e("s_and_b32 s%d, s%d, 1" % (s_shift, s_pair))
        e("s_lshl_b32 s%d, s%d, 4" % (s_shift, s_shift))
        e("s_lshl_b32 s%d, 1, s%d" % (s_tmp, s_shift))
        e("v_mov_b32 v%d, s%d" % (v_arr, s_tmp))
        e("s_lshr_b32 s%d, s%d, 1" % (s_tmp, s_pair))
        e("s_lshl_b32 s%d, s%d, 2" % (s_tmp, s_tmp))
        e("v_add_u32 v%d, s%d, v%d" % (v_t0, s_tmp, v_aoff))
        e("buffer_atomic_add v%d, v%d, s[%d:%d], 0 offen sc0" % (v_arr, v_t0, SD, SD + 3))
        g.label("L_noarr")
    q = []
    for b in range(D):
        q += [("K", b), ("V", b)]
    for k in range(R + D):
        if k == R:
            arrival()
        b = k % D
        pref = k < R
        i = q.index(("K", b))
        wk = 8 * (len(q) - 1 - i)
        q = q[i + 1:]
        if pref:
            q.append(("K", b))
        i = q.index(("V", b))
        wv = 8 * (len(q) - 1 - i)
        q = q[i + 1:]
        if pref:
            q.append(("V", b))
        body(b, pref, wk, wv, "e%d" % k)
    e("s_cmp_lg_u32 s%d, 0" % s_wave)
    e("s_cbranch_scc1 L_lds")
    e("v_readfirstlane_b32 s%d, v%d" % (s_role, v_arr))
    e("s_xor_b32 s%d, s%d, 1" % (s_tmp, s_split))
    e("s_lshl_b32 s%d, s%d, 11" % (s_tmp, s_tmp))
    e("s_lshr_b32 s%d, s%d, s%d" % (s_role, s_role, s_shift))
    e("s_and_b32 s%d, s%d, 0xffff" % (s_role, s_role))
    e("s_cmp_eq_u32 s%d, 0" % s_role)
    e("s_cbranch_scc1 L_lds")
    e("v_lshrrev_b32 v%d, 5, v%d" % (v_t3, v_lane))
    e("v_lshlrev_b32 v%d, 3, v%d" % (v_t3, v_t3))
    e("buffer_load_dwordx4 %s, v%d, s[%d:%d], s%d offen sc0 sc1" % (vr(PO, 4), v_voff, SP, SP + 3, s_tmp))
    e("buffer_load_dwordx2 %s, v%d, s[%d:%d], s%d offen offset:1024 sc0 sc1" % (vr(PML, 2), v_t3, SP, SP + 3, s_tmp))
    g.label("L_lds")
    e("v_mov_b32 v%d, v%d" % (v_t1, v_l))
    e("s_nop 1")
    e("v_permlane32_swap_b32 v%d, v%d" % (v_l, v_t1))
    e("v_add_f32 v%d, v%d, v%d" % (v_l, v_l, v_t1))
    e("v_mov_b32 v%d, v%d" % (v_t1, v_l))
    e("s_nop 1")
    e("v_permlane16_swap_b32 v%d, v%d" % (v_l, v_t1))
    e("v_add_f32 v%d, v%d, v%d" % (v_l, v_l, v_t1))
    e("v_and_b32 v%d, 1, v%d" % (v_t0, v_lane))
    e("v_lshrrev_b32 v%d, 4, v%d" % (v_t1, v_lane))
    e("v_lshlrev_b32 v%d, 9, v%d" % (v_t2, v_t0))
    e("v_lshl_add_u32 v%d, v%d, 7, v%d" % (v_t2, v_t1, v_t2))
    e("s_lshl_b32 s%d, s%d, 10" % (s_tmp2, s_wave))
    e("v_add_u32 v%d, s%d, v%d" % (v_t2, s_tmp2, v_t2))
    e("s_lshl_b32 s%d, s%d, 4" % (s_tmp2, s_wave))
    e("s_add_u32 s%d, s%d, %d" % (s_tmp2, s_tmp2, LML))
    e("v_lshlrev_b32 v%d, 3, v%d" % (v_t0, v_t0))
    e("v_add_u32 v%d, s%d, v%d" % (v_t0, s_tmp2, v_t0))
    e("s_mov_b32 exec_lo, 0x00030003")
    e("s_mov_b32 exec_hi, 0x00030003")
    for i in range(8):
        e("ds_write_b128 v%d, %s offset:%d" % (v_t2, vr(O + 4 * i, 4), 16 * i))
    e("ds_write_b64 v%d, %s" % (v_t0, vr(v_m, 2)))
    e("s_mov_b64 exec, -1")
    e("s_waitcnt lgkmcnt(0)")
    e("s_barrier")
    e("s_cmp_lg_u32 s%d, 0" % s_wave)
    e("s_cbranch_scc1 L_end")
    if STAMPS:
        e("s_memrealtime s[52:53]")
    A = XB
    ML = XB + 4 * NP
    if ML & 1: ML += 1
    e("v_lshrrev_b32 v%d, 5, v%d" % (v_t1, v_lane))
    e("v_lshlrev_b32 v%d, 3, v%d" % (v_t1, v_t1))
    for w in range(NP):
        e("ds_read_b64 %s, v%d offset:%d" % (vr(ML + 2 * w, 2), v_t1, LML + 16 * w))
    for w in range(NP):
        e("ds_read_b128 %s, v%d offset:%d" % (vr(A + 4 * w, 4), v_voff, 1024 * w))
    e("s_cmp_eq_u32 s%d, 0" % s_split)
    e("s_waitcnt lgkmcnt(0)")
    e("s_cbranch_scc1 L_has_tree")
    e("v_mov_b32 v%d, 0xff7fffff" % (ML + 2 * NW))
    e("v_mov_b32 v%d, 0" % (ML + 2 * NW + 1))
    for r in range(4):
        e("v_mov_b32 v%d, 0" % (A + 4 * NW + r))
    g.label("L_has_tree")
    e("v_max_f32 v%d, v%d, v%d" % (v_m, ML, ML + 2))
    for w in range(2, NP):
        e("v_max_f32 v%d, v%d, v%d" % (v_m, v_m, ML + 2 * w))
    for w in range(NP):
        e("v_sub_f32 v%d, v%d, v%d" % (ML + 2 * w, ML + 2 * w, v_m))
    for w in range(NP):
        e("v_exp_f32 v%d, v%d" % (ML + 2 * w, ML + 2 * w))
    e("s_nop 0")
    e("v_mul_f32 v%d, v%d, v%d" % (v_l, ML, ML + 1))
    for r in range(4):
        e("v_mul_f32 v%d, v%d, v%d" % (O + r, A + r, ML))
    for w in range(1, NP):
        e("v_fma_f32 v%d, v%d, v%d, v%d" % (v_l, ML + 2 * w, ML + 2 * w + 1, v_l))
        for r in range(4):
            e("v_fma_f32 v%d, v%d, v%d, v%d" % (O + r, A + 4 * w + r, ML + 2 * w, O + r))
    e("s_cmp_lg_u32 s%d, 0" % s_role)
    e("s_cbranch_scc1 L_combine")
    for r in range(4):
        e("v_min_u32 v%d, 0xfffffffe, v%d" % (O + r, O + r))
    e("v_min_u32 v%d, 0xfffffffe, v%d" % (v_m, v_m))
    e("v_min_u32 v%d, 0xfffffffe, v%d" % (v_l, v_l))
    e("s_lshl_b32 s%d, s%d, 11" % (s_tmp, s_split))
    e("buffer_store_dwordx4 %s, v%d, s[%d:%d], s%d offen sc0 sc1" % (vr(O, 4), v_voff, SP, SP + 3, s_tmp))
    e("buffer_store_dwordx2 %s, v%d, s[%d:%d], s%d offen offset:1024 sc0 sc1" % (vr(v_m, 2), v_t1, SP, SP + 3, s_tmp))
    e("s_branch L_fin")
    g.label("L_combine")
    e("s_waitcnt vmcnt(0)")
    g.label("L_check")
    e("v_max3_u32 v%d, v%d, v%d, v%d" % (v_t0, PO, PO + 1, PO + 2))
    e("v_max3_u32 v%d, v%d, v%d, v%d" % (v_t0, v_t0, PO + 3, PML))
    e("v_max_u32 v%d, v%d, v%d" % (v_t0, v_t0, PML + 1))
    e("v_cmp_eq_u32 vcc, -1, v%d" % v_t0)
    e("s_cbranch_vccz L_valid")
    e("s_xor_b32 s%d, s%d, 1" % (s_tmp, s_split))
    e("s_lshl_b32 s%d, s%d, 11" % (s_tmp, s_tmp))
    e("buffer_load_dwordx4 %s, v%d, s[%d:%d], s%d offen sc0 sc1" % (vr(PO, 4), v_voff, SP, SP + 3, s_tmp))
    e("buffer_load_dwordx2 %s, v%d, s[%d:%d], s%d offen offset:1024 sc0 sc1" % (vr(PML, 2), v_t1, SP, SP + 3, s_tmp))
    e("s_waitcnt vmcnt(0)")
    e("s_branch L_check")
    g.label("L_valid")
    e("v_max_f32 v%d, v%d, v%d" % (v_t0, v_m, PML))
    e("v_sub_f32 v%d, v%d, v%d" % (v_t2, v_m, v_t0))
    e("v_sub_f32 v%d, v%d, v%d" % (v_t3, PML, v_t0))
    e("v_exp_f32 v%d, v%d" % (v_t2, v_t2))
    e("v_exp_f32 v%d, v%d" % (v_t3, v_t3))
    e("s_lshl_b32 s%d, s%d, 9" % (s_tmp, s_pair))
    e("s_add_u32 s%d, s%d, s%d" % (SX, kout, s_tmp))
    e("s_addc_u32 s%d, s%d, 0" % (SX + 1, kout + 1))
    e("v_mul_f32 v%d, v%d, v%d" % (v_l, v_l, v_t2))
    e("v_fma_f32 v%d, v%d, v%d, v%d" % (v_l, PML + 1, v_t3, v_l))
    e("v_rcp_f32 v%d, v%d" % (v_l, v_l))
    for r in range(4):
        e("v_mul_f32 v%d, v%d, v%d" % (O + r, O + r, v_t2))
    for r in range(4):
        e("v_fma_f32 v%d, v%d, v%d, v%d" % (O + r, PO + r, v_t3, O + r))
    e("v_lshrrev_b32 v%d, 3, v%d" % (v_t0, v_lane))
    e("v_lshlrev_b32 v%d, 6, v%d" % (v_t0, v_t0))
    e("v_and_b32 v%d, 7, v%d" % (v_t1, v_lane))
    e("v_lshl_add_u32 v%d, v%d, 1, v%d" % (v_t0, v_t1, v_t0))
    for r in range(4):
        e("v_mul_f32 v%d, v%d, v%d" % (O + r, O + r, v_l))
    e("v_cvt_pk_bf16_f32 v%d, v%d, v%d" % (P, O, O + 1))
    e("v_cvt_pk_bf16_f32 v%d, v%d, v%d" % (P + 1, O + 2, O + 3))
    e("buffer_store_short v%d, v%d, s[%d:%d], 0 offen" % (P, v_t0, SX, SX + 3))
    e("buffer_store_short_d16_hi v%d, v%d, s[%d:%d], 0 offen offset:16" % (P, v_t0, SX, SX + 3))
    e("buffer_store_short v%d, v%d, s[%d:%d], 0 offen offset:32" % (P + 1, v_t0, SX, SX + 3))
    e("buffer_store_short_d16_hi v%d, v%d, s[%d:%d], 0 offen offset:48" % (P + 1, v_t0, SX, SX + 3))
    g.label("L_fin")
    if STAMPS:
        e("s_waitcnt vmcnt(0)")
        e("s_memrealtime s[54:55]")
        e("s_getreg_b32 s68, hwreg(HW_REG_XCC_ID)")
        e("s_getreg_b32 s69, hwreg(HW_REG_HW_ID)")
        e("s_lshl_b32 s44, s2, 6")
        e("s_add_u32 s44, s44, 0x20000000")
        e("s_add_u32 s16, s40, s44")
        e("s_addc_u32 s17, s41, 0")
        e("s_mov_b32 s18, 64")
        e("s_mov_b32 s19, 0x00020000")
        e("s_waitcnt lgkmcnt(0)")
        for i in range(8):
            e("v_mov_b32 v%d, s%d" % (20 + i, 48 + i))
        e("v_mov_b32 v28, s68")
        e("v_mov_b32 v29, s69")
        e("v_mov_b32 v10, 0")
        e("s_mov_b64 exec, 1")
        e("buffer_store_dwordx4 v[20:23], v10, s[16:19], 0 offen")
        e("buffer_store_dwordx4 v[24:27], v10, s[16:19], 0 offen offset:16")
        e("buffer_store_dwordx2 v[28:29], v10, s[16:19], 0 offen offset:32")
    e("s_branch L_end")

    g.label("L_tree")
    TQ = O
    e("v_lshrrev_b32 v%d, 5, v%d" % (v_t1, v_lane))
    e("v_and_b32 v%d, 31, v%d" % (v_t0, v_lane))
    e("v_lshlrev_b32 v%d, 3, v%d" % (v_t0, v_t0))
    e("v_lshl_add_u32 v%d, v%d, 8, v%d" % (v_al, v_t1, v_t0))
    e("buffer_load_dwordx2 %s, v%d, s[%d:%d], 0 offen" % (vr(TQ, 2), v_al, SX, SX + 3))
    e("s_lshl_b32 s%d, s%d, 8" % (s_tmp2, s_pair))
    e("s_add_u32 s%d, s%d, s%d" % (SP, kkt, s_tmp2))
    e("s_addc_u32 s%d, s%d, 0" % (SP + 1, kkt + 1))
    e("s_mov_b32 s%d, 256" % (SP + 2))
    e("s_mov_b32 s%d, 0x00020000" % (SP + 3))
    e("buffer_load_dwordx2 %s, v%d, s[%d:%d], 0 offen" % (vr(TQ + 2, 2), v_t0, SP, SP + 3))
    e("s_add_u32 s%d, s%d, s%d" % (SP, kvt, s_tmp2))
    e("s_addc_u32 s%d, s%d, 0" % (SP + 1, kvt + 1))
    e("v_bfe_u32 v%d, v%d, 3, 2" % (v_mn, v_lane))
    e("v_lshlrev_b32 v%d, 6, v%d" % (v_mn, v_mn))
    e("v_and_b32 v%d, 7, v%d" % (v_al, v_lane))
    e("v_lshl_add_u32 v%d, v%d, 1, v%d" % (v_mn, v_al, v_mn))
    for r in range(4):
        e("buffer_load_ushort v%d, v%d, s[%d:%d], 0 offen offset:%d" % (TQ + 4 + r, v_mn, SP, SP + 3, 16 * r))
    e("s_mov_b32 s%d, s%d" % (SP, kmask))
    e("s_mov_b32 s%d, s%d" % (SP + 1, kmask + 1))
    e("s_mov_b32 s%d, 16" % (SP + 2))
    e("s_lshr_b32 s%d, s%d, 4" % (s_tmp2, s_pair))
    e("s_lshl_b32 s%d, s%d, 1" % (s_tmp2, s_tmp2))
    e("v_mov_b32 v%d, s%d" % (v_al, s_tmp2))
    e("buffer_load_ushort v%d, v%d, s[%d:%d], 0 offen" % (TQ + 8, v_al, SP, SP + 3))
    if QFIRST:
        loadQ(); loadK(0)
    else:
        loadK(0); loadQ()
    loadV(0); advance()
    for b in range(1, D):
        loadK(b); loadV(b); advance()
    e("s_mov_b32 s%d, 0x3e0293ee" % s_c)
    e("s_waitcnt vmcnt(%d)" % (16 * D + 4))
    e("v_lshlrev_b32 v%d, 16, v%d" % (v_t0, TQ))
    e("v_lshlrev_b32 v%d, 16, v%d" % (v_t1, TQ + 2))
    e("v_mul_f32 v%d, v%d, v%d" % (v_t2, v_t0, v_t1))
    e("v_and_b32 v%d, 0xffff0000, v%d" % (v_t0, TQ))
    e("v_and_b32 v%d, 0xffff0000, v%d" % (v_t1, TQ + 2))
    e("v_fma_f32 v%d, v%d, v%d, v%d" % (v_t2, v_t0, v_t1, v_t2))
    e("v_lshlrev_b32 v%d, 16, v%d" % (v_t0, TQ + 1))
    e("v_lshlrev_b32 v%d, 16, v%d" % (v_t1, TQ + 3))
    e("v_fma_f32 v%d, v%d, v%d, v%d" % (v_t2, v_t0, v_t1, v_t2))
    e("v_and_b32 v%d, 0xffff0000, v%d" % (v_t0, TQ + 1))
    e("v_and_b32 v%d, 0xffff0000, v%d" % (v_t1, TQ + 3))
    e("v_fma_f32 v%d, v%d, v%d, v%d" % (v_t2, v_t0, v_t1, v_t2))
    for sh in (8, 4, 2, 1):
        e("s_nop 1")
        e("v_add_f32_dpp v%d, v%d, v%d row_ror:%d row_mask:0xf bank_mask:0xf" % (v_t2, v_t2, v_t2, sh))
    e("v_mov_b32 v%d, v%d" % (v_t1, v_t2))
    e("s_nop 1")
    e("v_permlane16_swap_b32 v%d, v%d" % (v_t2, v_t1))
    e("v_add_f32 v%d, v%d, v%d" % (v_t2, v_t2, v_t1))
    e("v_lshlrev_b32 v%d, 16, v%d" % (v_t1, TQ + 8))
    e("v_sub_f32 v%d, 1.0, v%d" % (v_t1, v_t1))
    e("v_mul_f32 v%d, 0xceabfb8f, v%d" % (v_t1, v_t1))
    e("v_fma_f32 v%d, v%d, s%d, v%d" % (v_m, v_t2, s_c, v_t1))
    e("v_mov_b32 v%d, 1.0" % v_l)
    for r in range(4):
        e("v_lshlrev_b32 v%d, 16, v%d" % (TQ + 4 + r, TQ + 4 + r))
    e("v_lshrrev_b32 v%d, 5, v%d" % (v_t1, v_lane))
    e("v_lshlrev_b32 v%d, 3, v%d" % (v_t1, v_t1))
    e("ds_write_b128 v%d, %s offset:%d" % (v_voff, vr(TQ + 4, 4), 1024 * NW))
    e("ds_write_b64 v%d, %s offset:%d" % (v_t1, vr(v_m, 2), LML + 16 * NW))
    e("s_waitcnt lgkmcnt(0)")
    e("s_branch L_tree_done")
    g.label("L_end")
    e("s_endpgm")
    txt = g.text()
    txt = txt.replace("    s_mov_b32 s%d, 0x3e0293ee\n    s_mov_b32 s%d, 0x05040100\n" % (s_c, s_sello),
                      "L_tree_done:\n    s_mov_b32 s%d, 0x3e0293ee\n    s_mov_b32 s%d, 0x05040100\n" % (s_c, s_sello), 1)
    txt = txt.replace("L_tree_ret:\n", "")

    lds = max(LDS, LML + 16 * NP)
    nv = (VEND + 7) // 8 * 8
    acc_off = nv
    if KACC: nv = nv + 32 * D
    out = HEADER
    out += "; @launch grid=(%d,1,1) block=(%d,1,1) lds=%d\n" % (NWG, 64 * NW, lds)
    out += '.amdgcn_target "amdgcn-amd-amdhsa--gfx950"\n.text\n.globl %s_kernel\n.p2align 8\n.type %s_kernel,@function\n%s_kernel:\n' % (NAME, NAME, NAME)
    out += txt
    out += """.section .rodata,"a"
.p2align 6
.amdhsa_kernel %s_kernel
  .amdhsa_next_free_vgpr %d
  .amdhsa_next_free_sgpr 72
  .amdhsa_accum_offset %d
  .amdhsa_group_segment_fixed_size 0
  .amdhsa_kernarg_size 72
  .amdhsa_user_sgpr_count 2
  .amdhsa_user_sgpr_kernarg_segment_ptr 1
  .amdhsa_system_sgpr_workgroup_id_x 1
.end_amdhsa_kernel
""" % (NAME, nv, acc_off)
    return out

if __name__ == "__main__":
    ap = argparse.ArgumentParser()
    ap.add_argument("-o", required=True)
    ap.add_argument("--nw", type=int, default=2)
    ap.add_argument("--depth", type=int, default=2)
    ap.add_argument("--il", type=int, default=2)
    ap.add_argument("--map", default="splitmajor")
    ap.add_argument("--kflags", default="nt")
    ap.add_argument("--vflags", default="nt")
    ap.add_argument("--stamps", action="store_true")
    ap.add_argument("--kacc", action="store_true")
    ap.add_argument("--qfirst", action="store_true")
    a = ap.parse_args()
    open(a.o, "w").write(gen(NW=a.nw, D=a.depth, IL=a.il, MAP=a.map, KFLAGS=a.kflags, VFLAGS=a.vflags, STAMPS=a.stamps, KACC=a.kacc, QFIRST=a.qfirst))
```

```python
import sys, argparse
from gen1 import NAME, HEADER, Gen, vr, sr

def gen(NW=2, D=2, IL=2, MAP="splitmajor", KFLAGS="nt", VFLAGS="nt", STAMPS=False, LDS=90000, KACC=False, QFIRST=False, SKIPBR=True):
    g = Gen()
    e = g.e
    NSPLIT = 2
    NWG = 256
    NT = 8192 // NSPLIT // 32 // NW
    TSTRIDE = NW * 8192
    JUMP = (NSPLIT - 1) * IL * NW * 8192
    TW = 1 if NW > 1 else 0
    v_koff = 1
    v_voff = 2
    v_lane = 3
    v_m = 4
    v_l = 5
    v_t0 = 6
    v_t1 = 7
    v_al = 8
    v_mn = 9
    v_t2 = 10
    v_t3 = 11
    v_arr = 12
    v_aoff = 13
    PO = 14
    PML = 18
    Q = 20
    S = Q + 16
    P = S + 8
    T = P + 4
    O = T + 12
    if KACC:
        VB = O + 32
        KB = 0
        VEND = VB + 32 * D
        XB = VB
    else:
        KB = O + 32
        VB = KB + 32 * D
        VEND = VB + 32 * D
        XB = KB
    def kr(base, n):
        return ("a[%d:%d]" if KACC else "v[%d:%d]") % (base, base + n - 1)
    s_pair = 3
    s_split = 4
    s_wave = 5
    s_c = 6
    s_sello = 7
    SK = 8
    SV = 12
    SX = 16
    s_ko = 20
    s_ko2 = 21
    s_cnt = 22
    s_selhi = 23
    s_ptr = 24
    s_tmp = 44
    s_tmp2 = 45
    s_ilc = 46
    s_ilj = 47
    SP = 56
    s_role = 60
    s_jA = 62
    s_jB = 63
    s_shift = 61
    SD = 64
    kq, kk, kv, kkt, kvt, kmask, kout, kdbg, kws = [s_ptr + 2 * i for i in range(9)]
    NP = NW + 1
    LML = NP * 1024

    e("s_cmp_ge_u32 s2, %d" % NWG)
    e("s_cbranch_scc1 L_end")
    e("s_load_dwordx16 s[24:39], s[0:1], 0")
    e("s_load_dwordx2 s[40:41], s[0:1], 64")
    if STAMPS:
        e("s_memrealtime s[48:49]")
    if MAP == "pairmajor":
        e("s_lshr_b32 s%d, s2, 1" % s_pair)
        e("s_and_b32 s%d, s2, 1" % s_split)
    else:
        e("s_and_b32 s%d, s2, 127" % s_pair)
        e("s_lshr_b32 s%d, s2, 7" % s_split)
    e("v_lshrrev_b32 v%d, 6, v0" % v_t0)
    e("v_and_b32 v%d, 63, v0" % v_lane)
    e("v_readfirstlane_b32 s%d, v%d" % (s_wave, v_t0))
    e("v_and_b32 v%d, 3, v%d" % (v_t0, v_lane))
    e("v_lshlrev_b32 v%d, 10, v%d" % (v_t0, v_t0))
    e("v_bfe_u32 v%d, v%d, 2, 2" % (v_t1, v_lane))
    e("v_lshl_add_u32 v%d, v%d, 8, v%d" % (v_t0, v_t1, v_t0))
    e("v_lshrrev_b32 v%d, 4, v%d" % (v_t2, v_lane))
    e("v_lshl_add_u32 v%d, v%d, 4, v%d" % (v_koff, v_t2, v_t0))
    e("v_lshlrev_b32 v%d, 4, v%d" % (v_voff, v_lane))
    e("v_and_b32 v%d, 1, v%d" % (v_t1, v_lane))
    e("v_lshlrev_b32 v%d, 8, v%d" % (v_t1, v_t1))
    e("v_lshl_add_u32 v%d, v%d, 4, v%d" % (v_t3, v_t2, v_t1))
    e("s_lshl_b32 s%d, s%d, 21" % (s_tmp, s_pair))
    e("s_mul_i32 s%d, s%d, %d" % (s_tmp2, s_split, IL * NW * 8192))
    e("s_add_u32 s%d, s%d, s%d" % (s_tmp, s_tmp, s_tmp2))
    e("s_lshl_b32 s%d, s%d, 13" % (s_ko, s_wave))
    e("s_add_u32 s%d, s%d, 4096" % (s_ko2, s_ko))
    e("s_mov_b32 s%d, 0" % s_ilc)
    e("s_mov_b32 s%d, %d" % (s_jA, TSTRIDE + JUMP))
    e("s_mov_b32 s%d, %d" % (s_jB, TSTRIDE))
    e("s_lshl_b32 s%d, s%d, 9" % (s_tmp2, s_pair))
    e("s_mov_b32 s%d, 0x00200000" % (SK + 2))
    e("s_mov_b32 s%d, 0x00020000" % (SK + 3))
    e("s_mov_b32 s%d, 0x00200000" % (SV + 2))
    e("s_mov_b32 s%d, 0x00020000" % (SV + 3))
    e("s_mov_b32 s%d, 512" % (SX + 2))
    e("s_mov_b32 s%d, 0x00020000" % (SX + 3))
    if NW > 1:
        e("s_xor_b32 s%d, s%d, %d" % (s_role, s_wave, TW))
        e("s_or_b32 s%d, s%d, s%d" % (s_role, s_role, s_split))
    else:
        e("s_mov_b32 s%d, s%d" % (s_role, s_split))
    e("s_waitcnt lgkmcnt(0)")
    e("s_add_u32 s%d, s%d, s%d" % (SK, kk, s_tmp))
    e("s_addc_u32 s%d, s%d, 0" % (SK + 1, kk + 1))
    e("s_add_u32 s%d, s%d, s%d" % (SV, kv, s_tmp))
    e("s_addc_u32 s%d, s%d, 0" % (SV + 1, kv + 1))
    e("s_add_u32 s%d, s%d, s%d" % (SX, kq, s_tmp2))
    e("s_addc_u32 s%d, s%d, 0" % (SX + 1, kq + 1))

    def loadK(b):
        for t in range(2):
            for j in range(4):
                e("buffer_load_dwordx4 %s, v%d, s[%d:%d], s%d offen offset:%d %s" % (
                    kr(KB + 32 * b + 16 * t + 4 * j, 4), v_koff, SK, SK + 3, (s_ko, s_ko2)[t], 64 * j, KFLAGS))
    def loadV(b):
        for x in range(8):
            e("buffer_load_dwordx4 %s, v%d, s[%d:%d], s%d offen offset:%d %s" % (
                vr(VB + 32 * b + 4 * x, 4), v_voff, SV, SV + 3, (s_ko, s_ko2)[x >> 2], 1024 * (x & 3), VFLAGS))
    def loadQ():
        for j in range(4):
            e("buffer_load_dwordx4 %s, v%d, s[%d:%d], 0 offen offset:%d" % (vr(Q + 4 * j, 4), v_t3, SX, SX + 3, 64 * j))
    def advance():
        e("s_add_u32 s%d, s%d, 1" % (s_ilc, s_ilc))
        e("s_and_b32 s%d, s%d, %d" % (s_ilj, s_ilc, IL - 1))
        e("s_cmp_eq_u32 s%d, 0" % s_ilj)
        e("s_cselect_b32 s%d, s%d, s%d" % (s_ilj, s_jA, s_jB))
        e("s_add_u32 s%d, s%d, s%d" % (s_ko, s_ko, s_ilj))
        e("s_add_u32 s%d, s%d, 4096" % (s_ko2, s_ko))

    e("s_cmp_eq_u32 s%d, 0" % s_role)
    e("s_cbranch_scc1 L_tree")
    g.label("L_tree_ret")
    if QFIRST:
        loadQ(); loadK(0)
    else:
        loadK(0); loadQ()
    loadV(0); advance()
    for b in range(1, D):
        loadK(b); loadV(b); advance()
    e("s_mov_b32 s%d, 0x3e0293ee" % s_c)
    e("s_mov_b32 s%d, 0x05040100" % s_sello)
    e("s_mov_b32 s%d, 0x07060302" % s_selhi)
    e("v_mov_b32 v%d, 0xff7fffff" % v_m)
    e("v_mov_b32 v%d, 0" % v_l)
    for i in range(32):
        e("v_mov_b32 v%d, 0" % (O + i))
    e("s_lshl_b32 s%d, s%d, 12" % (s_tmp, s_pair))
    e("s_add_u32 s%d, s%d, s%d" % (SP, kws, s_tmp))
    e("s_addc_u32 s%d, s%d, 0" % (SP + 1, kws + 1))
    e("s_mov_b32 s%d, 4096" % (SP + 2))
    e("s_mov_b32 s%d, 0x00020000" % (SP + 3))
    e("s_cmp_lg_u32 s%d, 0" % s_wave)
    e("s_cbranch_scc1 L_noclear")
    e("v_cmp_eq_u32 vcc, 0, v%d" % v_lane)
    e("v_mov_b32 v%d, 0x7ffffff0" % v_t0)
    for i in range(4):
        e("v_mov_b32 v%d, -1" % (T + i))
    e("v_cndmask_b32 v%d, v%d, 0, vcc" % (v_aoff, v_t0))
    e("s_lshl_b32 s%d, s%d, 11" % (s_tmp, s_split))
    e("v_add_u32 v%d, 1024, v%d" % (v_t0, v_aoff))
    e("buffer_store_dwordx4 %s, v%d, s[%d:%d], s%d offen sc0 sc1" % (vr(T, 4), v_voff, SP, SP + 3, s_tmp))
    e("buffer_store_dwordx4 %s, v%d, s[%d:%d], s%d offen sc0 sc1" % (vr(T, 4), v_t0, SP, SP + 3, s_tmp))
    e("s_mov_b32 s%d, s%d" % (SD, kdbg))
    e("s_mov_b32 s%d, s%d" % (SD + 1, kdbg + 1))
    e("s_mov_b32 s%d, 256" % (SD + 2))
    e("s_mov_b32 s%d, 0x00020000" % (SD + 3))
    g.label("L_noclear")
    if STAMPS:
        e("s_waitcnt vmcnt(%d)" % (16 * D - 8))
        e("s_memrealtime s[50:51]")

    def body(b, pref, wk, wv, tag):
        e("s_waitcnt vmcnt(%d)" % wk)
        for j in range(4):
            for t in range(2):
                c = "0" if j == 0 else vr(S + 4 * t, 4)
                e("v_mfma_f32_16x16x32_bf16 %s, %s, %s, %s" % (vr(S + 4 * t, 4), kr(KB + 32 * b + 16 * t + 4 * j, 4), vr(Q + 4 * j, 4), c))
        if pref:
            loadK(b)
        else:
            e("s_nop 7")
        e("v_max3_f32 v%d, v%d, v%d, v%d" % (v_t0, S, S + 1, S + 2))
        e("v_max3_f32 v%d, v%d, v%d, v%d" % (v_t1, S + 3, S + 4, S + 5))
        e("v_max3_f32 v%d, v%d, v%d, v%d" % (v_t0, v_t0, S + 6, S + 7))
        e("v_max_f32 v%d, v%d, v%d" % (v_t0, v_t0, v_t1))
        e("v_mov_b32 v%d, v%d" % (v_t1, v_t0))
        e("s_nop 1")
        e("v_permlane32_swap_b32 v%d, v%d" % (v_t0, v_t1))
        e("v_max_f32 v%d, v%d, v%d" % (v_t0, v_t0, v_t1))
        e("v_mov_b32 v%d, v%d" % (v_t1, v_t0))
        e("s_nop 1")
        e("v_permlane16_swap_b32 v%d, v%d" % (v_t0, v_t1))
        e("v_max_f32 v%d, v%d, v%d" % (v_t0, v_t0, v_t1))
        e("v_mul_f32 v%d, s%d, v%d" % (v_t0, s_c, v_t0))
        if SKIPBR:
            e("v_cmp_gt_f32 vcc, v%d, v%d" % (v_t0, v_m))
            e("s_cbranch_vccz L_skip_%s" % tag)
        e("v_max_f32 v%d, v%d, v%d" % (v_mn, v_m, v_t0))
        e("v_sub_f32 v%d, v%d, v%d" % (v_t1, v_m, v_mn))
        e("v_exp_f32 v%d, v%d" % (v_al, v_t1))
        e("v_mov_b32 v%d, v%d" % (v_m, v_mn))
        e("v_mul_f32 v%d, v%d, v%d" % (v_l, v_l, v_al))
        for i in range(32):
            e("v_mul_f32 v%d, v%d, v%d" % (O + i, O + i, v_al))
        if SKIPBR:
            g.label("L_skip_%s" % tag)
        for i in range(8):
            e("v_fma_f32 v%d, v%d, s%d, -v%d" % (S + i, S + i, s_c, v_m))
        for i in range(8):
            e("v_exp_f32 v%d, v%d" % (S + i, S + i))
        e("s_nop 0")
        for y in range(4):
            e("v_cvt_pk_bf16_f32 v%d, v%d, v%d" % (P + y, S + 2 * y, S + 2 * y + 1))
        e("v_add_f32 v%d, v%d, v%d" % (v_t0, S, S + 1))
        e("v_add_f32 v%d, v%d, v%d" % (v_t1, S + 2, S + 3))
        e("v_add_f32 v%d, v%d, v%d" % (v_t2, S + 4, S + 5))
        e("v_add_f32 v%d, v%d, v%d" % (v_t3, S + 6, S + 7))
        e("v_add_f32 v%d, v%d, v%d" % (v_t0, v_t0, v_t1))
        e("v_add_f32 v%d, v%d, v%d" % (v_t2, v_t2, v_t3))
        e("v_add_f32 v%d, v%d, v%d" % (v_t0, v_t0, v_t2))
        e("v_add_f32 v%d, v%d, v%d" % (v_l, v_l, v_t0))
        e("s_waitcnt vmcnt(%d)" % wv)
        def perm(i):
            sel = s_selhi if (i & 1) else s_sello
            for y in range(4):
                lo = VB + 32 * b + 4 * (2 * y) + (i >> 1)
                hi = VB + 32 * b + 4 * (2 * y + 1) + (i >> 1)
                e("v_perm_b32 v%d, v%d, v%d, s%d" % (T + 4 * (i % 3) + y, hi, lo, sel))
        def pv(i):
            e("v_mfma_f32_16x16x32_bf16 %s, %s, %s, %s" % (vr(O + 4 * i, 4), vr(T + 4 * (i % 3), 4), vr(P, 4), vr(O + 4 * i, 4)))
        perm(0)
        for i in range(8):
            if i + 1 < 8:
                perm(i + 1)
            else:
                e("s_nop 1")
            pv(i)
        if pref:
            loadV(b)
            advance()

    NLOOP = (NT - D) // D
    R = (NT - D) % D
    W = 16 * D - 8
    e("s_mov_b32 s%d, %d" % (s_cnt, NLOOP))
    g.label("L_loop")
    for b in range(D):
        body(b, True, W, W, "m%d" % b)
    e("s_sub_u32 s%d, s%d, 1" % (s_cnt, s_cnt))
    e("s_cmp_lg_u32 s%d, 0" % s_cnt)
    e("s_cbranch_scc1 L_loop")
    def arrival():
        e("s_cmp_lg_u32 s%d, 0" % s_wave)
        e("s_cbranch_scc1 L_noarr")
        e("s_and_b32 s%d, s%d, 1" % (s_shift, s_pair))
        e("s_lshl_b32 s%d, s%d, 4" % (s_shift, s_shift))
        e("s_lshl_b32 s%d, 1, s%d" % (s_tmp, s_shift))
        e("v_mov_b32 v%d, s%d" % (v_arr, s_tmp))
        e("s_lshr_b32 s%d, s%d, 1" % (s_tmp, s_pair))
        e("s_lshl_b32 s%d, s%d, 2" % (s_tmp, s_tmp))
        e("v_add_u32 v%d, s%d, v%d" % (v_t0, s_tmp, v_aoff))
        e("buffer_atomic_add v%d, v%d, s[%d:%d], 0 offen sc0" % (v_arr, v_t0, SD, SD + 3))
        g.label("L_noarr")
    q = []
    for b in range(D):
        q += [("K", b), ("V", b)]
    for k in range(R + D):
        if k == R:
            arrival()
        b = k % D
        pref = k < R
        i = q.index(("K", b))
        wk = 8 * (len(q) - 1 - i)
        q = q[i + 1:]
        if pref:
            q.append(("K", b))
        i = q.index(("V", b))
        wv = 8 * (len(q) - 1 - i)
        q = q[i + 1:]
        if pref:
            q.append(("V", b))
        body(b, pref, wk, wv, "e%d" % k)
    e("s_cmp_lg_u32 s%d, 0" % s_wave)
    e("s_cbranch_scc1 L_lds")
    e("v_readfirstlane_b32 s%d, v%d" % (s_role, v_arr))
    e("s_xor_b32 s%d, s%d, 1" % (s_tmp, s_split))
    e("s_lshl_b32 s%d, s%d, 11" % (s_tmp, s_tmp))
    e("s_lshr_b32 s%d, s%d, s%d" % (s_role, s_role, s_shift))
    e("s_and_b32 s%d, s%d, 1" % (s_role, s_role))
    e("s_cmp_eq_u32 s%d, 0" % s_role)
    e("s_cbranch_scc1 L_lds")
    e("v_lshrrev_b32 v%d, 5, v%d" % (v_t3, v_lane))
    e("v_lshlrev_b32 v%d, 3, v%d" % (v_t3, v_t3))
    e("buffer_load_dwordx4 %s, v%d, s[%d:%d], s%d offen sc0 sc1" % (vr(PO, 4), v_voff, SP, SP + 3, s_tmp))
    e("buffer_load_dwordx2 %s, v%d, s[%d:%d], s%d offen offset:1024 sc0 sc1" % (vr(PML, 2), v_t3, SP, SP + 3, s_tmp))
    g.label("L_lds")
    e("v_mov_b32 v%d, v%d" % (v_t1, v_l))
    e("s_nop 1")
    e("v_permlane32_swap_b32 v%d, v%d" % (v_l, v_t1))
    e("v_add_f32 v%d, v%d, v%d" % (v_l, v_l, v_t1))
    e("v_mov_b32 v%d, v%d" % (v_t1, v_l))
    e("s_nop 1")
    e("v_permlane16_swap_b32 v%d, v%d" % (v_l, v_t1))
    e("v_add_f32 v%d, v%d, v%d" % (v_l, v_l, v_t1))
    e("v_and_b32 v%d, 1, v%d" % (v_t0, v_lane))
    e("v_lshrrev_b32 v%d, 4, v%d" % (v_t1, v_lane))
    e("v_lshlrev_b32 v%d, 9, v%d" % (v_t2, v_t0))
    e("v_lshl_add_u32 v%d, v%d, 7, v%d" % (v_t2, v_t1, v_t2))
    e("s_lshl_b32 s%d, s%d, 10" % (s_tmp2, s_wave))
    e("v_add_u32 v%d, s%d, v%d" % (v_t2, s_tmp2, v_t2))
    e("s_lshl_b32 s%d, s%d, 4" % (s_tmp2, s_wave))
    e("s_add_u32 s%d, s%d, %d" % (s_tmp2, s_tmp2, LML))
    e("v_lshlrev_b32 v%d, 3, v%d" % (v_t0, v_t0))
    e("v_add_u32 v%d, s%d, v%d" % (v_t0, s_tmp2, v_t0))
    e("s_mov_b32 exec_lo, 0x00030003")
    e("s_mov_b32 exec_hi, 0x00030003")
    for i in range(8):
        e("ds_write_b128 v%d, %s offset:%d" % (v_t2, vr(O + 4 * i, 4), 16 * i))
    e("ds_write_b64 v%d, %s" % (v_t0, vr(v_m, 2)))
    e("s_mov_b64 exec, -1")
    e("s_waitcnt lgkmcnt(0)")
    e("s_barrier")
    e("s_cmp_lg_u32 s%d, 0" % s_wave)
    e("s_cbranch_scc1 L_end")
    if STAMPS:
        e("s_memrealtime s[52:53]")
    A = XB
    ML = XB + 4 * NP
    if ML & 1: ML += 1
    e("v_lshrrev_b32 v%d, 5, v%d" % (v_t1, v_lane))
    e("v_lshlrev_b32 v%d, 3, v%d" % (v_t1, v_t1))
    for w in range(NP):
        e("ds_read_b64 %s, v%d offset:%d" % (vr(ML + 2 * w, 2), v_t1, LML + 16 * w))
    for w in range(NP):
        e("ds_read_b128 %s, v%d offset:%d" % (vr(A + 4 * w, 4), v_voff, 1024 * w))
    e("s_cmp_eq_u32 s%d, 0" % s_split)
    e("s_waitcnt lgkmcnt(0)")
    e("s_cbranch_scc1 L_has_tree")
    e("v_mov_b32 v%d, 0xff7fffff" % (ML + 2 * NW))
    e("v_mov_b32 v%d, 0" % (ML + 2 * NW + 1))
    for r in range(4):
        e("v_mov_b32 v%d, 0" % (A + 4 * NW + r))
    g.label("L_has_tree")
    e("v_max_f32 v%d, v%d, v%d" % (v_m, ML, ML + 2))
    for w in range(2, NP):
        e("v_max_f32 v%d, v%d, v%d" % (v_m, v_m, ML + 2 * w))
    for w in range(NP):
        e("v_sub_f32 v%d, v%d, v%d" % (ML + 2 * w, ML + 2 * w, v_m))
    for w in range(NP):
        e("v_exp_f32 v%d, v%d" % (ML + 2 * w, ML + 2 * w))
    e("s_nop 0")
    e("v_mul_f32 v%d, v%d, v%d" % (v_l, ML, ML + 1))
    for r in range(4):
        e("v_mul_f32 v%d, v%d, v%d" % (O + r, A + r, ML))
    for w in range(1, NP):
        e("v_fma_f32 v%d, v%d, v%d, v%d" % (v_l, ML + 2 * w, ML + 2 * w + 1, v_l))
        for r in range(4):
            e("v_fma_f32 v%d, v%d, v%d, v%d" % (O + r, A + 4 * w + r, ML + 2 * w, O + r))
    e("s_cmp_lg_u32 s%d, 0" % s_role)
    e("s_cbranch_scc1 L_combine")
    for r in range(4):
        e("v_min_u32 v%d, 0xfffffffe, v%d" % (O + r, O + r))
    e("v_min_u32 v%d, 0xfffffffe, v%d" % (v_m, v_m))
    e("v_min_u32 v%d, 0xfffffffe, v%d" % (v_l, v_l))
    e("s_lshl_b32 s%d, s%d, 11" % (s_tmp, s_split))
    e("buffer_store_dwordx4 %s, v%d, s[%d:%d], s%d offen sc0 sc1" % (vr(O, 4), v_voff, SP, SP + 3, s_tmp))
    e("buffer_store_dwordx2 %s, v%d, s[%d:%d], s%d offen offset:1024 sc0 sc1" % (vr(v_m, 2), v_t1, SP, SP + 3, s_tmp))
    e("s_branch L_fin")
    g.label("L_combine")
    e("s_mov_b32 s%d, 0x100000" % s_cnt)
    e("s_waitcnt vmcnt(0)")
    g.label("L_check")
    e("v_max3_u32 v%d, v%d, v%d, v%d" % (v_t0, PO, PO + 1, PO + 2))
    e("v_max3_u32 v%d, v%d, v%d, v%d" % (v_t0, v_t0, PO + 3, PML))
    e("v_max_u32 v%d, v%d, v%d" % (v_t0, v_t0, PML + 1))
    e("v_cmp_eq_u32 vcc, -1, v%d" % v_t0)
    e("s_cbranch_vccz L_valid")
    e("s_sub_u32 s%d, s%d, 1" % (s_cnt, s_cnt))
    e("s_cbranch_scc1 L_valid")
    e("s_xor_b32 s%d, s%d, 1" % (s_tmp, s_split))
    e("s_lshl_b32 s%d, s%d, 11" % (s_tmp, s_tmp))
    e("buffer_load_dwordx4 %s, v%d, s[%d:%d], s%d offen sc0 sc1" % (vr(PO, 4), v_voff, SP, SP + 3, s_tmp))
    e("buffer_load_dwordx2 %s, v%d, s[%d:%d], s%d offen offset:1024 sc0 sc1" % (vr(PML, 2), v_t1, SP, SP + 3, s_tmp))
    e("s_waitcnt vmcnt(0)")
    e("s_branch L_check")
    g.label("L_valid")
    e("v_max_f32 v%d, v%d, v%d" % (v_t0, v_m, PML))
    e("v_sub_f32 v%d, v%d, v%d" % (v_t2, v_m, v_t0))
    e("v_sub_f32 v%d, v%d, v%d" % (v_t3, PML, v_t0))
    e("v_exp_f32 v%d, v%d" % (v_t2, v_t2))
    e("v_exp_f32 v%d, v%d" % (v_t3, v_t3))
    e("s_lshl_b32 s%d, s%d, 9" % (s_tmp, s_pair))
    e("s_add_u32 s%d, s%d, s%d" % (SX, kout, s_tmp))
    e("s_addc_u32 s%d, s%d, 0" % (SX + 1, kout + 1))
    e("v_mul_f32 v%d, v%d, v%d" % (v_l, v_l, v_t2))
    e("v_fma_f32 v%d, v%d, v%d, v%d" % (v_l, PML + 1, v_t3, v_l))
    e("v_rcp_f32 v%d, v%d" % (v_l, v_l))
    for r in range(4):
        e("v_mul_f32 v%d, v%d, v%d" % (O + r, O + r, v_t2))
    for r in range(4):
        e("v_fma_f32 v%d, v%d, v%d, v%d" % (O + r, PO + r, v_t3, O + r))
    e("v_lshrrev_b32 v%d, 3, v%d" % (v_t0, v_lane))
    e("v_lshlrev_b32 v%d, 6, v%d" % (v_t0, v_t0))
    e("v_and_b32 v%d, 7, v%d" % (v_t1, v_lane))
    e("v_lshl_add_u32 v%d, v%d, 1, v%d" % (v_t0, v_t1, v_t0))
    for r in range(4):
        e("v_mul_f32 v%d, v%d, v%d" % (O + r, O + r, v_l))
    e("v_cvt_pk_bf16_f32 v%d, v%d, v%d" % (P, O, O + 1))
    e("v_cvt_pk_bf16_f32 v%d, v%d, v%d" % (P + 1, O + 2, O + 3))
    e("buffer_store_short v%d, v%d, s[%d:%d], 0 offen" % (P, v_t0, SX, SX + 3))
    e("buffer_store_short_d16_hi v%d, v%d, s[%d:%d], 0 offen offset:16" % (P, v_t0, SX, SX + 3))
    e("buffer_store_short v%d, v%d, s[%d:%d], 0 offen offset:32" % (P + 1, v_t0, SX, SX + 3))
    e("buffer_store_short_d16_hi v%d, v%d, s[%d:%d], 0 offen offset:48" % (P + 1, v_t0, SX, SX + 3))
    g.label("L_fin")
    if STAMPS:
        e("s_waitcnt vmcnt(0)")
        e("s_memrealtime s[54:55]")
        e("s_getreg_b32 s68, hwreg(HW_REG_XCC_ID)")
        e("s_getreg_b32 s69, hwreg(HW_REG_HW_ID)")
        e("s_lshl_b32 s44, s2, 6")
        e("s_add_u32 s44, s44, 0x20000000")
        e("s_add_u32 s16, s40, s44")
        e("s_addc_u32 s17, s41, 0")
        e("s_mov_b32 s18, 64")
        e("s_mov_b32 s19, 0x00020000")
        e("s_waitcnt lgkmcnt(0)")
        for i in range(8):
            e("v_mov_b32 v%d, s%d" % (20 + i, 48 + i))
        e("v_mov_b32 v28, s68")
        e("v_mov_b32 v29, s69")
        e("v_mov_b32 v10, 0")
        e("s_mov_b64 exec, 1")
        e("buffer_store_dwordx4 v[20:23], v10, s[16:19], 0 offen")
        e("buffer_store_dwordx4 v[24:27], v10, s[16:19], 0 offen offset:16")
        e("buffer_store_dwordx2 v[28:29], v10, s[16:19], 0 offen offset:32")
    e("s_branch L_end")

    g.label("L_tree")
    TQ = O
    e("v_lshrrev_b32 v%d, 5, v%d" % (v_t1, v_lane))
    e("v_and_b32 v%d, 31, v%d" % (v_t0, v_lane))
    e("v_lshlrev_b32 v%d, 3, v%d" % (v_t0, v_t0))
    e("v_lshl_add_u32 v%d, v%d, 8, v%d" % (v_al, v_t1, v_t0))
    e("buffer_load_dwordx2 %s, v%d, s[%d:%d], 0 offen" % (vr(TQ, 2), v_al, SX, SX + 3))
    e("s_lshl_b32 s%d, s%d, 8" % (s_tmp2, s_pair))
    e("s_add_u32 s%d, s%d, s%d" % (SP, kkt, s_tmp2))
    e("s_addc_u32 s%d, s%d, 0" % (SP + 1, kkt + 1))
    e("s_mov_b32 s%d, 256" % (SP + 2))
    e("s_mov_b32 s%d, 0x00020000" % (SP + 3))
    e("buffer_load_dwordx2 %s, v%d, s[%d:%d], 0 offen" % (vr(TQ + 2, 2), v_t0, SP, SP + 3))
    e("s_add_u32 s%d, s%d, s%d" % (SP, kvt, s_tmp2))
    e("s_addc_u32 s%d, s%d, 0" % (SP + 1, kvt + 1))
    e("v_bfe_u32 v%d, v%d, 3, 2" % (v_mn, v_lane))
    e("v_lshlrev_b32 v%d, 6, v%d" % (v_mn, v_mn))
    e("v_and_b32 v%d, 7, v%d" % (v_al, v_lane))
    e("v_lshl_add_u32 v%d, v%d, 1, v%d" % (v_mn, v_al, v_mn))
    for r in range(4):
        e("buffer_load_ushort v%d, v%d, s[%d:%d], 0 offen offset:%d" % (TQ + 4 + r, v_mn, SP, SP + 3, 16 * r))
    e("s_mov_b32 s%d, s%d" % (SP, kmask))
    e("s_mov_b32 s%d, s%d" % (SP + 1, kmask + 1))
    e("s_mov_b32 s%d, 16" % (SP + 2))
    e("s_lshr_b32 s%d, s%d, 4" % (s_tmp2, s_pair))
    e("s_lshl_b32 s%d, s%d, 1" % (s_tmp2, s_tmp2))
    e("v_mov_b32 v%d, s%d" % (v_al, s_tmp2))
    e("buffer_load_ushort v%d, v%d, s[%d:%d], 0 offen" % (TQ + 8, v_al, SP, SP + 3))
    if QFIRST:
        loadQ(); loadK(0)
    else:
        loadK(0); loadQ()
    loadV(0); advance()
    for b in range(1, D):
        loadK(b); loadV(b); advance()
    e("s_mov_b32 s%d, 0x3e0293ee" % s_c)
    e("s_waitcnt vmcnt(%d)" % (16 * D + 4))
    e("v_lshlrev_b32 v%d, 16, v%d" % (v_t0, TQ))
    e("v_lshlrev_b32 v%d, 16, v%d" % (v_t1, TQ + 2))
    e("v_mul_f32 v%d, v%d, v%d" % (v_t2, v_t0, v_t1))
    e("v_and_b32 v%d, 0xffff0000, v%d" % (v_t0, TQ))
    e("v_and_b32 v%d, 0xffff0000, v%d" % (v_t1, TQ + 2))
    e("v_fma_f32 v%d, v%d, v%d, v%d" % (v_t2, v_t0, v_t1, v_t2))
    e("v_lshlrev_b32 v%d, 16, v%d" % (v_t0, TQ + 1))
    e("v_lshlrev_b32 v%d, 16, v%d" % (v_t1, TQ + 3))
    e("v_fma_f32 v%d, v%d, v%d, v%d" % (v_t2, v_t0, v_t1, v_t2))
    e("v_and_b32 v%d, 0xffff0000, v%d" % (v_t0, TQ + 1))
    e("v_and_b32 v%d, 0xffff0000, v%d" % (v_t1, TQ + 3))
    e("v_fma_f32 v%d, v%d, v%d, v%d" % (v_t2, v_t0, v_t1, v_t2))
    for sh in (8, 4, 2, 1):
        e("s_nop 1")
        e("v_add_f32_dpp v%d, v%d, v%d row_ror:%d row_mask:0xf bank_mask:0xf" % (v_t2, v_t2, v_t2, sh))
    e("v_mov_b32 v%d, v%d" % (v_t1, v_t2))
    e("s_nop 1")
    e("v_permlane16_swap_b32 v%d, v%d" % (v_t2, v_t1))
    e("v_add_f32 v%d, v%d, v%d" % (v_t2, v_t2, v_t1))
    e("v_lshlrev_b32 v%d, 16, v%d" % (v_t1, TQ + 8))
    e("v_sub_f32 v%d, 1.0, v%d" % (v_t1, v_t1))
    e("v_mul_f32 v%d, 0xceabfb8f, v%d" % (v_t1, v_t1))
    e("v_fma_f32 v%d, v%d, s%d, v%d" % (v_m, v_t2, s_c, v_t1))
    e("v_mov_b32 v%d, 1.0" % v_l)
    for r in range(4):
        e("v_lshlrev_b32 v%d, 16, v%d" % (TQ + 4 + r, TQ + 4 + r))
    e("v_lshrrev_b32 v%d, 5, v%d" % (v_t1, v_lane))
    e("v_lshlrev_b32 v%d, 3, v%d" % (v_t1, v_t1))
    e("ds_write_b128 v%d, %s offset:%d" % (v_voff, vr(TQ + 4, 4), 1024 * NW))
    e("ds_write_b64 v%d, %s offset:%d" % (v_t1, vr(v_m, 2), LML + 16 * NW))
    e("s_waitcnt lgkmcnt(0)")
    e("s_branch L_tree_done")
    g.label("L_end")
    e("s_endpgm")
    txt = g.text()
    txt = txt.replace("    s_mov_b32 s%d, 0x3e0293ee\n    s_mov_b32 s%d, 0x05040100\n" % (s_c, s_sello),
                      "L_tree_done:\n    s_mov_b32 s%d, 0x3e0293ee\n    s_mov_b32 s%d, 0x05040100\n" % (s_c, s_sello), 1)
    txt = txt.replace("L_tree_ret:\n", "")

    lds = max(LDS, LML + 16 * NP)
    nv = (VEND + 7) // 8 * 8
    acc_off = nv
    if KACC: nv = nv + 32 * D
    out = HEADER
    out += "; @launch grid=(%d,1,1) block=(%d,1,1) lds=%d\n" % (NWG, 64 * NW, lds)
    out += '.amdgcn_target "amdgcn-amd-amdhsa--gfx950"\n.text\n.globl %s_kernel\n.p2align 8\n.type %s_kernel,@function\n%s_kernel:\n' % (NAME, NAME, NAME)
    out += txt
    out += """.section .rodata,"a"
.p2align 6
.amdhsa_kernel %s_kernel
  .amdhsa_next_free_vgpr %d
  .amdhsa_next_free_sgpr 72
  .amdhsa_accum_offset %d
  .amdhsa_group_segment_fixed_size 0
  .amdhsa_kernarg_size 72
  .amdhsa_user_sgpr_count 2
  .amdhsa_user_sgpr_kernarg_segment_ptr 1
  .amdhsa_system_sgpr_workgroup_id_x 1
.end_amdhsa_kernel
""" % (NAME, nv, acc_off)
    return out

if __name__ == "__main__":
    ap = argparse.ArgumentParser()
    ap.add_argument("-o", required=True)
    ap.add_argument("--nw", type=int, default=2)
    ap.add_argument("--depth", type=int, default=2)
    ap.add_argument("--il", type=int, default=2)
    ap.add_argument("--map", default="splitmajor")
    ap.add_argument("--kflags", default="nt")
    ap.add_argument("--vflags", default="nt")
    ap.add_argument("--stamps", action="store_true")
    ap.add_argument("--kacc", action="store_true")
    ap.add_argument("--qfirst", action="store_true")
    a = ap.parse_args()
    open(a.o, "w").write(gen(NW=a.nw, D=a.depth, IL=a.il, MAP=a.map, KFLAGS=a.kflags, VFLAGS=a.vflags, STAMPS=a.stamps, KACC=a.kacc, QFIRST=a.qfirst))
```

```python
import sys, argparse
from gen1 import NAME, HEADER, Gen, vr, sr

def gen(NW=1, D=3, IL=8, MAP="splitmajor", KFLAGS="nt", VFLAGS="nt", STAMPS=False, LDS=90000, KACC=True, OFLAGS="", THR=8.0, LMFMA=True, LAZY=True):
    import struct
    def fbits(x): return struct.unpack("<I", struct.pack("<f", x))[0]
    g = Gen()
    e = g.e
    NSPLIT = 2
    NWG = 256
    NT = 8192 // NSPLIT // 32 // NW
    TSTRIDE = NW * 8192
    JUMP = (NSPLIT - 1) * IL * NW * 8192
    TW = 1 if NW > 1 else 0
    CSC = 128 ** -0.5 * 1.4426950408889634
    v_koff = 1
    v_voff = 2
    v_lane = 3
    v_m = 4
    v_l = 5
    v_t0 = 6
    v_t1 = 7
    v_al = 8
    v_mn = 9
    v_t2 = 10
    v_t3 = 11
    v_arr = 12
    v_aoff = 13
    PO = 14
    PML = 18
    v_thr = 20
    LQ = 24
    ONES = 28
    Q = 32
    S = Q + 16
    P = S + 8
    T = P + 4
    O = T + 12
    if KACC:
        VB = O + 32
        KB = 0
        VEND = VB + 32 * D
        XB = VB
    else:
        KB = O + 32
        VB = KB + 32 * D
        VEND = VB + 32 * D
        XB = KB
    def kr(base, n):
        return ("a[%d:%d]" if KACC else "v[%d:%d]") % (base, base + n - 1)
    s_pair = 3
    s_split = 4
    s_wave = 5
    s_c = 6
    s_sello = 7
    SK = 8
    SV = 12
    SX = 16
    s_ko = 20
    s_ko2 = 21
    s_cnt = 22
    s_selhi = 23
    s_ptr = 24
    s_tmp = 44
    s_tmp2 = 45
    s_ilc = 46
    s_ilj = 47
    SP = 56
    s_role = 60
    s_shift = 61
    s_jA = 62
    s_jB = 63
    SD = 64
    s_rc = 70
    kq, kk, kv, kkt, kvt, kmask, kout, kdbg, kws = [s_ptr + 2 * i for i in range(9)]
    NP = NW + 1
    LML = NP * 1024

    e("s_cmp_ge_u32 s2, %d" % NWG)
    e("s_cbranch_scc1 L_end")
    e("s_load_dwordx16 s[24:39], s[0:1], 0")
    e("s_load_dwordx2 s[40:41], s[0:1], 64")
    if STAMPS:
        e("s_memrealtime s[48:49]")
    if MAP == "pairmajor":
        e("s_lshr_b32 s%d, s2, 1" % s_pair)
        e("s_and_b32 s%d, s2, 1" % s_split)
    else:
        e("s_and_b32 s%d, s2, 127" % s_pair)
        e("s_lshr_b32 s%d, s2, 7" % s_split)
    if NW > 1:
        e("v_lshrrev_b32 v%d, 6, v0" % v_t0)
        e("v_and_b32 v%d, 63, v0" % v_lane)
        e("v_readfirstlane_b32 s%d, v%d" % (s_wave, v_t0))
    else:
        e("v_mov_b32 v%d, v0" % v_lane)
        e("s_mov_b32 s%d, 0" % s_wave)
    e("v_and_b32 v%d, 3, v%d" % (v_t0, v_lane))
    e("v_lshlrev_b32 v%d, 10, v%d" % (v_t0, v_t0))
    e("v_bfe_u32 v%d, v%d, 2, 2" % (v_t1, v_lane))
    e("v_lshl_add_u32 v%d, v%d, 8, v%d" % (v_t0, v_t1, v_t0))
    e("v_lshrrev_b32 v%d, 4, v%d" % (v_t2, v_lane))
    e("v_lshl_add_u32 v%d, v%d, 4, v%d" % (v_koff, v_t2, v_t0))
    e("v_lshlrev_b32 v%d, 4, v%d" % (v_voff, v_lane))
    e("v_and_b32 v%d, 1, v%d" % (v_t1, v_lane))
    e("v_lshlrev_b32 v%d, 8, v%d" % (v_t1, v_t1))
    e("v_lshl_add_u32 v%d, v%d, 4, v%d" % (v_t3, v_t2, v_t1))
    e("s_lshl_b32 s%d, s%d, 21" % (s_tmp, s_pair))
    e("s_mul_i32 s%d, s%d, %d" % (s_tmp2, s_split, IL * NW * 8192))
    e("s_add_u32 s%d, s%d, s%d" % (s_tmp, s_tmp, s_tmp2))
    e("s_lshl_b32 s%d, s%d, 13" % (s_ko, s_wave))
    e("s_add_u32 s%d, s%d, 4096" % (s_ko2, s_ko))
    e("s_mov_b32 s%d, 0" % s_ilc)
    e("s_mov_b32 s%d, %d" % (s_jA, TSTRIDE + JUMP))
    e("s_mov_b32 s%d, %d" % (s_jB, TSTRIDE))
    e("s_lshl_b32 s%d, s%d, 9" % (s_tmp2, s_pair))
    e("s_mov_b32 s%d, 0x00200000" % (SK + 2))
    e("s_mov_b32 s%d, 0x00020000" % (SK + 3))
    e("s_mov_b32 s%d, 0x00200000" % (SV + 2))
    e("s_mov_b32 s%d, 0x00020000" % (SV + 3))
    e("s_mov_b32 s%d, 512" % (SX + 2))
    e("s_mov_b32 s%d, 0x00020000" % (SX + 3))
    e("s_xor_b32 s%d, s%d, %d" % (s_role, s_wave, TW))
    e("s_or_b32 s%d, s%d, s%d" % (s_role, s_role, s_split))
    e("v_and_b32 v%d, 31, v%d" % (v_al, v_lane))
    e("v_lshlrev_b32 v%d, 3, v%d" % (v_al, v_al))
    e("v_lshrrev_b32 v%d, 5, v%d" % (v_mn, v_lane))
    e("v_lshl_add_u32 v%d, v%d, 8, v%d" % (v_arr, v_mn, v_al))
    e("v_bfe_u32 v%d, v%d, 3, 2" % (v_mn, v_lane))
    e("v_lshlrev_b32 v%d, 6, v%d" % (v_mn, v_mn))
    e("v_and_b32 v%d, 7, v%d" % (v_t0, v_lane))
    e("v_lshl_add_u32 v%d, v%d, 1, v%d" % (v_mn, v_t0, v_mn))
    e("s_waitcnt lgkmcnt(0)")
    e("s_add_u32 s%d, s%d, s%d" % (SK, kk, s_tmp))
    e("s_addc_u32 s%d, s%d, 0" % (SK + 1, kk + 1))
    e("s_add_u32 s%d, s%d, s%d" % (SV, kv, s_tmp))
    e("s_addc_u32 s%d, s%d, 0" % (SV + 1, kv + 1))
    e("s_add_u32 s%d, s%d, s%d" % (SX, kq, s_tmp2))
    e("s_addc_u32 s%d, s%d, 0" % (SX + 1, kq + 1))

    def loadK(b):
        for t in range(2):
            for j in range(4):
                e("buffer_load_dwordx4 %s, v%d, s[%d:%d], s%d offen offset:%d %s" % (
                    kr(KB + 32 * b + 16 * t + 4 * j, 4), v_koff, SK, SK + 3, (s_ko, s_ko2)[t], 64 * j, KFLAGS))
    def loadV(b):
        for x in range(8):
            e("buffer_load_dwordx4 %s, v%d, s[%d:%d], s%d offen offset:%d %s" % (
                vr(VB + 32 * b + 4 * x, 4), v_voff, SV, SV + 3, (s_ko, s_ko2)[x >> 2], 1024 * (x & 3), VFLAGS))
    def loadQ():
        for j in range(4):
            e("buffer_load_dwordx4 %s, v%d, s[%d:%d], 0 offen offset:%d" % (vr(Q + 4 * j, 4), v_t3, SX, SX + 3, 64 * j))
    def advance():
        e("s_add_u32 s%d, s%d, 1" % (s_ilc, s_ilc))
        e("s_and_b32 s%d, s%d, %d" % (s_ilj, s_ilc, IL - 1))
        e("s_cmp_eq_u32 s%d, 0" % s_ilj)
        e("s_cselect_b32 s%d, s%d, s%d" % (s_ilj, s_jA, s_jB))
        e("s_add_u32 s%d, s%d, s%d" % (s_ko, s_ko, s_ilj))
        e("s_add_u32 s%d, s%d, 4096" % (s_ko2, s_ko))

    TQ = S
    e("s_cmp_lg_u32 s%d, 0" % s_role)
    e("s_cbranch_scc1 L_notree1")
    e("buffer_load_dwordx2 %s, v%d, s[%d:%d], 0 offen" % (vr(TQ, 2), v_arr, SX, SX + 3))
    e("s_lshl_b32 s%d, s%d, 8" % (s_tmp2, s_pair))
    e("s_add_u32 s%d, s%d, s%d" % (SP, kkt, s_tmp2))
    e("s_addc_u32 s%d, s%d, 0" % (SP + 1, kkt + 1))
    e("s_mov_b32 s%d, 256" % (SP + 2))
    e("s_mov_b32 s%d, 0x00020000" % (SP + 3))
    e("buffer_load_dwordx2 %s, v%d, s[%d:%d], 0 offen" % (vr(TQ + 2, 2), v_al, SP, SP + 3))
    e("s_add_u32 s%d, s%d, s%d" % (SP, kvt, s_tmp2))
    e("s_addc_u32 s%d, s%d, 0" % (SP + 1, kvt + 1))
    for r in range(4):
        e("buffer_load_ushort v%d, v%d, s[%d:%d], 0 offen offset:%d" % (TQ + 4 + r, v_mn, SP, SP + 3, 16 * r))
    e("s_mov_b32 s%d, s%d" % (SP, kmask))
    e("s_mov_b32 s%d, s%d" % (SP + 1, kmask + 1))
    e("s_mov_b32 s%d, 16" % (SP + 2))
    e("s_lshr_b32 s%d, s%d, 4" % (s_tmp2, s_pair))
    e("s_lshl_b32 s%d, s%d, 1" % (s_tmp2, s_tmp2))
    e("v_mov_b32 v%d, s%d" % (v_al, s_tmp2))
    e("buffer_load_ushort v%d, v%d, s[%d:%d], 0 offen" % (TQ + 8, v_al, SP, SP + 3))
    g.label("L_notree1")
    loadK(0); loadQ(); loadV(0); advance()
    for b in range(1, D):
        loadK(b); loadV(b); advance()
    e("s_mov_b32 s%d, 0x%08x" % (s_c, fbits(CSC)))
    e("s_mov_b32 s%d, 0x%08x" % (s_rc, fbits(1.0 / CSC)))
    e("s_mov_b32 s%d, 0x05040100" % s_sello)
    e("s_mov_b32 s%d, 0x07060302" % s_selhi)
    e("v_mov_b32 v%d, 0xff7fffff" % v_m)
    e("v_mov_b32 v%d, 0xff7fffff" % v_thr)
    e("v_mov_b32 v%d, 0" % v_l)
    for i in range(4):
        e("v_mov_b32 v%d, 0" % (LQ + i))
        e("v_mov_b32 v%d, 0x3f803f80" % (ONES + i))
    for i in range(32):
        e("v_mov_b32 v%d, 0" % (O + i))
    e("s_lshl_b32 s%d, s%d, 12" % (s_tmp, s_pair))
    e("s_add_u32 s%d, s%d, s%d" % (SP, kws, s_tmp))
    e("s_addc_u32 s%d, s%d, 0" % (SP + 1, kws + 1))
    e("s_mov_b32 s%d, 4096" % (SP + 2))
    e("s_mov_b32 s%d, 0x00020000" % (SP + 3))
    if NW > 1:
        e("s_cmp_lg_u32 s%d, 0" % s_wave)
        e("s_cbranch_scc1 L_noclear")
    e("v_cmp_eq_u32 vcc, 0, v%d" % v_lane)
    e("v_mov_b32 v%d, 0x7ffffff0" % v_t0)
    for i in range(4):
        e("v_mov_b32 v%d, -1" % (T + i))
    e("v_cndmask_b32 v%d, v%d, 0, vcc" % (v_aoff, v_t0))
    e("s_lshl_b32 s%d, s%d, 11" % (s_tmp, s_split))
    e("v_add_u32 v%d, 1024, v%d" % (v_t0, v_aoff))
    e("buffer_store_dwordx4 %s, v%d, s[%d:%d], s%d offen sc0 sc1" % (vr(T, 4), v_voff, SP, SP + 3, s_tmp))
    e("buffer_store_dwordx4 %s, v%d, s[%d:%d], s%d offen sc0 sc1" % (vr(T, 4), v_t0, SP, SP + 3, s_tmp))
    e("s_mov_b32 s%d, s%d" % (SD, kdbg))
    e("s_mov_b32 s%d, s%d" % (SD + 1, kdbg + 1))
    e("s_mov_b32 s%d, 256" % (SD + 2))
    e("s_mov_b32 s%d, 0x00020000" % (SD + 3))
    g.label("L_noclear")
    e("s_cmp_lg_u32 s%d, 0" % s_role)
    e("s_cbranch_scc1 L_notree2")
    e("s_waitcnt vmcnt(%d)" % (16 * D + 4 + (2 if TW == 0 else 0)))
    e("v_lshlrev_b32 v%d, 16, v%d" % (v_t0, TQ))
    e("v_lshlrev_b32 v%d, 16, v%d" % (v_t1, TQ + 2))
    e("v_mul_f32 v%d, v%d, v%d" % (v_t2, v_t0, v_t1))
    e("v_and_b32 v%d, 0xffff0000, v%d" % (v_t0, TQ))
    e("v_and_b32 v%d, 0xffff0000, v%d" % (v_t1, TQ + 2))
    e("v_fma_f32 v%d, v%d, v%d, v%d" % (v_t2, v_t0, v_t1, v_t2))
    e("v_lshlrev_b32 v%d, 16, v%d" % (v_t0, TQ + 1))
    e("v_lshlrev_b32 v%d, 16, v%d" % (v_t1, TQ + 3))
    e("v_fma_f32 v%d, v%d, v%d, v%d" % (v_t2, v_t0, v_t1, v_t2))
    e("v_and_b32 v%d, 0xffff0000, v%d" % (v_t0, TQ + 1))
    e("v_and_b32 v%d, 0xffff0000, v%d" % (v_t1, TQ + 3))
    e("v_fma_f32 v%d, v%d, v%d, v%d" % (v_t2, v_t0, v_t1, v_t2))
    for sh in (8, 4, 2, 1):
        e("s_nop 1")
        e("v_add_f32_dpp v%d, v%d, v%d row_ror:%d row_mask:0xf bank_mask:0xf" % (v_t2, v_t2, v_t2, sh))
    e("v_mov_b32 v%d, v%d" % (v_t1, v_t2))
    e("s_nop 1")
    e("v_permlane16_swap_b32 v%d, v%d" % (v_t2, v_t1))
    e("v_add_f32 v%d, v%d, v%d" % (v_t2, v_t2, v_t1))
    e("v_lshlrev_b32 v%d, 16, v%d" % (v_t1, TQ + 8))
    e("v_sub_f32 v%d, 1.0, v%d" % (v_t1, v_t1))
    e("v_mul_f32 v%d, 0xceabfb8f, v%d" % (v_t1, v_t1))
    e("v_fma_f32 v%d, v%d, s%d, v%d" % (v_t0, v_t2, s_c, v_t1))
    e("v_mov_b32 v%d, 1.0" % v_t1)
    for r in range(4):
        e("v_lshlrev_b32 v%d, 16, v%d" % (TQ + 4 + r, TQ + 4 + r))
    e("v_lshrrev_b32 v%d, 5, v%d" % (v_t2, v_lane))
    e("v_lshlrev_b32 v%d, 3, v%d" % (v_t2, v_t2))
    e("ds_write_b128 v%d, %s offset:%d" % (v_voff, vr(TQ + 4, 4), 1024 * NW))
    e("ds_write_b64 v%d, %s offset:%d" % (v_t2, vr(v_t0, 2), LML + 16 * NW))
    e("s_waitcnt lgkmcnt(0)")
    g.label("L_notree2")
    if STAMPS:
        e("s_waitcnt vmcnt(%d)" % (16 * D - 8))
        e("s_memrealtime s[50:51]")

    rare_blocks = []
    def body(b, pref, wk, wv, tag):
        e("s_waitcnt vmcnt(%d)" % wk)
        for j in range(4):
            for t in range(2):
                c = "0" if j == 0 else vr(S + 4 * t, 4)
                e("v_mfma_f32_16x16x32_bf16 %s, %s, %s, %s" % (vr(S + 4 * t, 4), kr(KB + 32 * b + 16 * t + 4 * j, 4), vr(Q + 4 * j, 4), c))
        if pref:
            loadK(b)
        else:
            e("s_nop 7")
        e("v_max3_f32 v%d, v%d, v%d, v%d" % (v_t0, S, S + 1, S + 2))
        e("v_max3_f32 v%d, v%d, v%d, v%d" % (v_t1, S + 3, S + 4, S + 5))
        e("v_max3_f32 v%d, v%d, v%d, v%d" % (v_t0, v_t0, S + 6, S + 7))
        e("v_max_f32 v%d, v%d, v%d" % (v_t0, v_t0, v_t1))
        e("v_cmp_gt_f32 vcc, v%d, v%d" % (v_t0, v_thr))
        e("s_cbranch_vccnz L_rare_%s" % tag)
        g.label("L_back_%s" % tag)
        rare_blocks.append(tag)
        for i in range(8):
            e("v_fma_f32 v%d, v%d, s%d, -v%d" % (S + i, S + i, s_c, v_m))
        for i in range(8):
            e("v_exp_f32 v%d, v%d" % (S + i, S + i))
        for y in range(4):
            e("v_cvt_pk_bf16_f32 v%d, v%d, v%d" % (P + y, S + 2 * y, S + 2 * y + 1))
        e("s_waitcnt vmcnt(%d)" % wv)
        def perm(i):
            sel = s_selhi if (i & 1) else s_sello
            for y in range(4):
                lo = VB + 32 * b + 4 * (2 * y) + (i >> 1)
                hi = VB + 32 * b + 4 * (2 * y + 1) + (i >> 1)
                e("v_perm_b32 v%d, v%d, v%d, s%d" % (T + 4 * (i % 3) + y, hi, lo, sel))
        def pv(i):
            e("v_mfma_f32_16x16x32_bf16 %s, %s, %s, %s" % (vr(O + 4 * i, 4), vr(T + 4 * (i % 3), 4), vr(P, 4), vr(O + 4 * i, 4)))
        perm(0)
        e("v_mfma_f32_16x16x32_bf16 %s, %s, %s, %s" % (vr(LQ, 4), vr(ONES, 4), vr(P, 4), vr(LQ, 4)))
        for i in range(8):
            if i + 1 < 8:
                perm(i + 1)
            else:
                e("s_nop 1")
            pv(i)
        if pref:
            loadV(b)
            advance()

    NLOOP = (NT - D) // D
    R = (NT - D) % D
    W = 16 * D - 8
    e("s_mov_b32 s%d, %d" % (s_cnt, NLOOP))
    g.label("L_loop")
    for b in range(D):
        body(b, True, W, W, "m%d" % b)
    e("s_sub_u32 s%d, s%d, 1" % (s_cnt, s_cnt))
    e("s_cmp_lg_u32 s%d, 0" % s_cnt)
    e("s_cbranch_scc1 L_loop")
    def arrival():
        if NW > 1:
            e("s_cmp_lg_u32 s%d, 0" % s_wave)
            e("s_cbranch_scc1 L_noarr")
        e("s_and_b32 s%d, s%d, 1" % (s_shift, s_pair))
        e("s_lshl_b32 s%d, s%d, 4" % (s_shift, s_shift))
        e("s_lshl_b32 s%d, 1, s%d" % (s_tmp, s_shift))
        e("v_mov_b32 v%d, s%d" % (v_arr, s_tmp))
        e("s_lshr_b32 s%d, s%d, 1" % (s_tmp, s_pair))
        e("s_lshl_b32 s%d, s%d, 2" % (s_tmp, s_tmp))
        e("v_add_u32 v%d, s%d, v%d" % (v_t0, s_tmp, v_aoff))
        e("buffer_atomic_add v%d, v%d, s[%d:%d], 0 offen sc0" % (v_arr, v_t0, SD, SD + 3))
        g.label("L_noarr")
    q = []
    for b in range(D):
        q += [("K", b), ("V", b)]
    for k in range(R + D):
        if k == R:
            arrival()
        b = k % D
        pref = k < R
        i = q.index(("K", b))
        wk = 8 * (len(q) - 1 - i)
        q = q[i + 1:]
        if pref:
            q.append(("K", b))
        i = q.index(("V", b))
        wv = 8 * (len(q) - 1 - i)
        q = q[i + 1:]
        if pref:
            q.append(("V", b))
        body(b, pref, wk, wv, "e%d" % k)
    if NW > 1:
        e("s_cmp_lg_u32 s%d, 0" % s_wave)
        e("s_cbranch_scc1 L_lds")
    e("v_readfirstlane_b32 s%d, v%d" % (s_role, v_arr))
    e("s_xor_b32 s%d, s%d, 1" % (s_tmp, s_split))
    e("s_lshl_b32 s%d, s%d, 11" % (s_tmp, s_tmp))
    e("s_lshr_b32 s%d, s%d, s%d" % (s_role, s_role, s_shift))
    e("s_and_b32 s%d, s%d, 1" % (s_role, s_role))
    e("s_cmp_eq_u32 s%d, 0" % s_role)
    e("s_cbranch_scc1 L_lds")
    e("v_lshrrev_b32 v%d, 5, v%d" % (v_t3, v_lane))
    e("v_lshlrev_b32 v%d, 3, v%d" % (v_t3, v_t3))
    e("buffer_load_dwordx4 %s, v%d, s[%d:%d], s%d offen sc0 sc1" % (vr(PO, 4), v_voff, SP, SP + 3, s_tmp))
    e("buffer_load_dwordx2 %s, v%d, s[%d:%d], s%d offen offset:1024 sc0 sc1" % (vr(PML, 2), v_t3, SP, SP + 3, s_tmp))
    g.label("L_lds")
    e("v_and_b32 v%d, 1, v%d" % (v_t0, v_lane))
    e("v_lshrrev_b32 v%d, 4, v%d" % (v_t1, v_lane))
    e("v_lshlrev_b32 v%d, 9, v%d" % (v_t2, v_t0))
    e("v_lshl_add_u32 v%d, v%d, 7, v%d" % (v_t2, v_t1, v_t2))
    e("s_lshl_b32 s%d, s%d, 10" % (s_tmp2, s_wave))
    e("v_add_u32 v%d, s%d, v%d" % (v_t2, s_tmp2, v_t2))
    e("s_lshl_b32 s%d, s%d, 4" % (s_tmp2, s_wave))
    e("s_add_u32 s%d, s%d, %d" % (s_tmp2, s_tmp2, LML))
    e("v_lshlrev_b32 v%d, 3, v%d" % (v_t0, v_t0))
    e("v_add_u32 v%d, s%d, v%d" % (v_t0, s_tmp2, v_t0))
    e("v_mov_b32 v%d, v%d" % (v_l, LQ))
    e("s_mov_b32 exec_lo, 0x00030003")
    e("s_mov_b32 exec_hi, 0x00030003")
    for i in range(8):
        e("ds_write_b128 v%d, %s offset:%d" % (v_t2, vr(O + 4 * i, 4), 16 * i))
    e("ds_write_b64 v%d, %s" % (v_t0, vr(v_m, 2)))
    e("s_mov_b64 exec, -1")
    e("s_waitcnt lgkmcnt(0)")
    if NW > 1:
        e("s_barrier")
        e("s_cmp_lg_u32 s%d, 0" % s_wave)
        e("s_cbranch_scc1 L_end")
    if STAMPS:
        e("s_memrealtime s[52:53]")
    A = XB
    ML = XB + 4 * NP
    if ML & 1: ML += 1
    e("v_lshrrev_b32 v%d, 5, v%d" % (v_t1, v_lane))
    e("v_lshlrev_b32 v%d, 3, v%d" % (v_t1, v_t1))
    for w in range(NP):
        e("ds_read_b64 %s, v%d offset:%d" % (vr(ML + 2 * w, 2), v_t1, LML + 16 * w))
    e("v_lshrrev_b32 v%d, 3, v%d" % (v_t2, v_lane))
    e("v_lshlrev_b32 v%d, 7, v%d" % (v_t2, v_t2))
    e("v_and_b32 v%d, 1, v%d" % (v_t3, v_lane))
    e("v_lshl_add_u32 v%d, v%d, 6, v%d" % (v_t2, v_t3, v_t2))
    e("v_bfe_u32 v%d, v%d, 1, 2" % (v_t3, v_lane))
    e("v_lshl_add_u32 v%d, v%d, 2, v%d" % (v_t2, v_t3, v_t2))
    for w in range(NP):
        for u in range(4):
            e("ds_read_b32 v%d, v%d offset:%d" % (A + 4 * w + u, v_t2, 1024 * w + 16 * u))
    e("s_cmp_eq_u32 s%d, 0" % s_split)
    e("s_waitcnt lgkmcnt(0)")
    e("s_cbranch_scc1 L_has_tree")
    e("v_mov_b32 v%d, 0xff7fffff" % (ML + 2 * NW))
    e("v_mov_b32 v%d, 0" % (ML + 2 * NW + 1))
    for r in range(4):
        e("v_mov_b32 v%d, 0" % (A + 4 * NW + r))
    g.label("L_has_tree")
    e("v_max_f32 v%d, v%d, v%d" % (v_m, ML, ML + 2))
    for w in range(2, NP):
        e("v_max_f32 v%d, v%d, v%d" % (v_m, v_m, ML + 2 * w))
    for w in range(NP):
        e("v_sub_f32 v%d, v%d, v%d" % (ML + 2 * w, ML + 2 * w, v_m))
    for w in range(NP):
        e("v_exp_f32 v%d, v%d" % (ML + 2 * w, ML + 2 * w))
    e("s_nop 0")
    e("v_mul_f32 v%d, v%d, v%d" % (v_l, ML, ML + 1))
    for r in range(4):
        e("v_mul_f32 v%d, v%d, v%d" % (O + r, A + r, ML))
    for w in range(1, NP):
        e("v_fma_f32 v%d, v%d, v%d, v%d" % (v_l, ML + 2 * w, ML + 2 * w + 1, v_l))
        for r in range(4):
            e("v_fma_f32 v%d, v%d, v%d, v%d" % (O + r, A + 4 * w + r, ML + 2 * w, O + r))
    e("s_cmp_lg_u32 s%d, 0" % s_role)
    e("s_cbranch_scc1 L_combine")
    for r in range(4):
        e("v_min_u32 v%d, 0xfffffffe, v%d" % (O + r, O + r))
    e("v_min_u32 v%d, 0xfffffffe, v%d" % (v_m, v_m))
    e("v_min_u32 v%d, 0xfffffffe, v%d" % (v_l, v_l))
    e("s_lshl_b32 s%d, s%d, 11" % (s_tmp, s_split))
    e("buffer_store_dwordx4 %s, v%d, s[%d:%d], s%d offen sc0 sc1" % (vr(O, 4), v_voff, SP, SP + 3, s_tmp))
    e("buffer_store_dwordx2 %s, v%d, s[%d:%d], s%d offen offset:1024 sc0 sc1" % (vr(v_m, 2), v_t1, SP, SP + 3, s_tmp))
    e("s_branch L_fin")
    g.label("L_combine")
    e("s_mov_b32 s%d, 0x100000" % s_cnt)
    e("s_waitcnt vmcnt(0)")
    g.label("L_check")
    e("v_max3_u32 v%d, v%d, v%d, v%d" % (v_t0, PO, PO + 1, PO + 2))
    e("v_max3_u32 v%d, v%d, v%d, v%d" % (v_t0, v_t0, PO + 3, PML))
    e("v_max_u32 v%d, v%d, v%d" % (v_t0, v_t0, PML + 1))
    e("v_cmp_eq_u32 vcc, -1, v%d" % v_t0)
    e("s_cbranch_vccz L_valid")
    e("s_sub_u32 s%d, s%d, 1" % (s_cnt, s_cnt))
    e("s_cbranch_scc1 L_valid")
    e("s_xor_b32 s%d, s%d, 1" % (s_tmp, s_split))
    e("s_lshl_b32 s%d, s%d, 11" % (s_tmp, s_tmp))
    e("buffer_load_dwordx4 %s, v%d, s[%d:%d], s%d offen sc0 sc1" % (vr(PO, 4), v_voff, SP, SP + 3, s_tmp))
    e("buffer_load_dwordx2 %s, v%d, s[%d:%d], s%d offen offset:1024 sc0 sc1" % (vr(PML, 2), v_t1, SP, SP + 3, s_tmp))
    e("s_waitcnt vmcnt(0)")
    e("s_branch L_check")
    g.label("L_valid")
    e("v_max_f32 v%d, v%d, v%d" % (v_t0, v_m, PML))
    e("v_sub_f32 v%d, v%d, v%d" % (v_t2, v_m, v_t0))
    e("v_sub_f32 v%d, v%d, v%d" % (v_t3, PML, v_t0))
    e("v_exp_f32 v%d, v%d" % (v_t2, v_t2))
    e("v_exp_f32 v%d, v%d" % (v_t3, v_t3))
    e("s_lshl_b32 s%d, s%d, 9" % (s_tmp, s_pair))
    e("s_add_u32 s%d, s%d, s%d" % (SX, kout, s_tmp))
    e("s_addc_u32 s%d, s%d, 0" % (SX + 1, kout + 1))
    e("v_mul_f32 v%d, v%d, v%d" % (v_l, v_l, v_t2))
    e("v_fma_f32 v%d, v%d, v%d, v%d" % (v_l, PML + 1, v_t3, v_l))
    e("v_rcp_f32 v%d, v%d" % (v_l, v_l))
    for r in range(4):
        e("v_mul_f32 v%d, v%d, v%d" % (O + r, O + r, v_t2))
    for r in range(4):
        e("v_fma_f32 v%d, v%d, v%d, v%d" % (O + r, PO + r, v_t3, O + r))
    e("v_lshlrev_b32 v%d, 3, v%d" % (v_t0, v_lane))
    for r in range(4):
        e("v_mul_f32 v%d, v%d, v%d" % (O + r, O + r, v_l))
    e("v_cvt_pk_bf16_f32 v%d, v%d, v%d" % (P, O, O + 1))
    e("v_cvt_pk_bf16_f32 v%d, v%d, v%d" % (P + 1, O + 2, O + 3))
    e("buffer_store_dwordx2 %s, v%d, s[%d:%d], 0 offen %s" % (vr(P, 2), v_t0, SX, SX + 3, OFLAGS))
    g.label("L_fin")
    if STAMPS:
        e("s_waitcnt vmcnt(0)")
        e("s_memrealtime s[54:55]")
        e("s_getreg_b32 s68, hwreg(HW_REG_XCC_ID)")
        e("s_getreg_b32 s69, hwreg(HW_REG_HW_ID)")
        e("s_lshl_b32 s44, s2, 6")
        e("s_add_u32 s44, s44, 0x20000000")
        e("s_add_u32 s16, s40, s44")
        e("s_addc_u32 s17, s41, 0")
        e("s_mov_b32 s18, 64")
        e("s_mov_b32 s19, 0x00020000")
        e("s_waitcnt lgkmcnt(0)")
        for i in range(8):
            e("v_mov_b32 v%d, s%d" % (32 + i, 48 + i))
        e("v_mov_b32 v40, s68")
        e("v_mov_b32 v41, s69")
        e("v_mov_b32 v10, 0")
        e("s_mov_b64 exec, 1")
        e("buffer_store_dwordx4 v[32:35], v10, s[16:19], 0 offen")
        e("buffer_store_dwordx4 v[36:39], v10, s[16:19], 0 offen offset:16")
        e("buffer_store_dwordx2 v[40:41], v10, s[16:19], 0 offen offset:32")
    g.label("L_end")
    e("s_endpgm")
    for tag in rare_blocks:
        g.label("L_rare_%s" % tag)
        e("v_mov_b32 v%d, v%d" % (v_t1, v_t0))
        e("s_nop 1")
        e("v_permlane32_swap_b32 v%d, v%d" % (v_t0, v_t1))
        e("v_max_f32 v%d, v%d, v%d" % (v_t0, v_t0, v_t1))
        e("v_mov_b32 v%d, v%d" % (v_t1, v_t0))
        e("s_nop 1")
        e("v_permlane16_swap_b32 v%d, v%d" % (v_t0, v_t1))
        e("v_max_f32 v%d, v%d, v%d" % (v_t0, v_t0, v_t1))
        e("v_mul_f32 v%d, s%d, v%d" % (v_t0, s_c, v_t0))
        e("v_max_f32 v%d, v%d, v%d" % (v_mn, v_m, v_t0))
        e("v_sub_f32 v%d, v%d, v%d" % (v_t1, v_m, v_mn))
        e("v_exp_f32 v%d, v%d" % (v_al, v_t1))
        e("v_mov_b32 v%d, v%d" % (v_m, v_mn))
        e("v_add_f32 v%d, 0x%08x, v%d" % (v_thr, fbits(THR), v_mn))
        e("v_mul_f32 v%d, s%d, v%d" % (v_thr, s_rc, v_thr))
        for i in range(4):
            e("v_mul_f32 v%d, v%d, v%d" % (LQ + i, LQ + i, v_al))
        for i in range(32):
            e("v_mul_f32 v%d, v%d, v%d" % (O + i, O + i, v_al))
        e("s_branch L_back_%s" % tag)
    txt = g.text()

    lds = max(LDS, LML + 16 * NP)
    nv = (VEND + 7) // 8 * 8
    acc_off = nv
    if KACC: nv = nv + 32 * D
    out = HEADER
    out += "; @launch grid=(%d,1,1) block=(%d,1,1) lds=%d\n" % (NWG, 64 * NW, lds)
    out += '.amdgcn_target "amdgcn-amd-amdhsa--gfx950"\n.text\n.globl %s_kernel\n.p2align 8\n.type %s_kernel,@function\n%s_kernel:\n' % (NAME, NAME, NAME)
    out += txt
    out += """.section .rodata,"a"
.p2align 6
.amdhsa_kernel %s_kernel
  .amdhsa_next_free_vgpr %d
  .amdhsa_next_free_sgpr 80
  .amdhsa_accum_offset %d
  .amdhsa_group_segment_fixed_size 0
  .amdhsa_kernarg_size 72
  .amdhsa_user_sgpr_count 2
  .amdhsa_user_sgpr_kernarg_segment_ptr 1
  .amdhsa_system_sgpr_workgroup_id_x 1
.end_amdhsa_kernel
""" % (NAME, nv, acc_off)
    return out

if __name__ == "__main__":
    ap = argparse.ArgumentParser()
    ap.add_argument("-o", required=True)
    ap.add_argument("--nw", type=int, default=1)
    ap.add_argument("--depth", type=int, default=3)
    ap.add_argument("--il", type=int, default=8)
    ap.add_argument("--map", default="splitmajor")
    ap.add_argument("--kflags", default="nt")
    ap.add_argument("--vflags", default="nt")
    ap.add_argument("--stamps", action="store_true")
    ap.add_argument("--nokacc", action="store_true")
    ap.add_argument("--oflags", default="")
    ap.add_argument("--lds", type=int, default=90000)
    ap.add_argument("--thr", type=float, default=8.0)
    a = ap.parse_args()
    open(a.o, "w").write(gen(NW=a.nw, D=a.depth, IL=a.il, MAP=a.map, KFLAGS=a.kflags, VFLAGS=a.vflags, STAMPS=a.stamps, KACC=not a.nokacc, OFLAGS=a.oflags, LDS=a.lds, THR=a.thr))
```

```python
import sys, argparse
from gen1 import NAME, HEADER, Gen, vr, sr

def gen(NW=1, D=3, IL=8, MAP="splitmajor", KFLAGS="nt", VFLAGS="nt", STAMPS=False, LDS=90000, KACC=True, OFLAGS="", THR=8.0, LMFMA=True, LAZY=True, TL=False, SPREAD=0, L2TEST=False, ONESTREAM=False, VSHIFT=0):
    import struct
    def fbits(x): return struct.unpack("<I", struct.pack("<f", x))[0]
    g = Gen()
    e = g.e
    NSPLIT = 2
    NWG = 256
    NT = 8192 // NSPLIT // 32 // NW
    TSTRIDE = NW * 8192
    JUMP = (NSPLIT - 1) * IL * NW * 8192
    TW = 1 if NW > 1 else 0
    CSC = 128 ** -0.5 * 1.4426950408889634
    v_koff = 1
    v_voff = 2
    v_lane = 3
    v_m = 4
    v_l = 5
    v_t0 = 6
    v_t1 = 7
    v_al = 8
    v_mn = 9
    v_t2 = 10
    v_t3 = 11
    v_arr = 12
    v_aoff = 13
    PO = 14
    PML = 18
    v_thr = 20
    v_tl = 21
    LQ = 24
    ONES = 28
    Q = 32
    S = Q + 16
    P = S + 8
    T = P + 4
    O = T + 12
    if KACC:
        VB = O + 32
        KB = 0
        VEND = VB + 32 * D
        XB = VB
    else:
        KB = O + 32
        VB = KB + 32 * D
        VEND = VB + 32 * D
        XB = KB
    def kr(base, n):
        return ("a[%d:%d]" if KACC else "v[%d:%d]") % (base, base + n - 1)
    s_pair = 3
    s_split = 4
    s_wave = 5
    s_c = 6
    s_sello = 7
    SK = 8
    SV = 12
    SX = 16
    s_ko = 20
    s_ko2 = 21
    s_cnt = 22
    s_selhi = 23
    s_ptr = 24
    s_tmp = 44
    s_tmp2 = 45
    s_ilc = 46
    s_ilj = 47
    SP = 56
    s_role = 60
    s_shift = 61
    s_jA = 62
    s_jB = 63
    SD = 64
    s_rc = 70
    kq, kk, kv, kkt, kvt, kmask, kout, kdbg, kws = [s_ptr + 2 * i for i in range(9)]
    NP = NW + 1
    LML = NP * 1024

    e("s_cmp_ge_u32 s2, %d" % NWG)
    e("s_cbranch_scc1 L_end")
    e("s_load_dwordx16 s[24:39], s[0:1], 0")
    e("s_load_dwordx2 s[40:41], s[0:1], 64")
    if STAMPS:
        e("s_memrealtime s[48:49]")
    if MAP == "pairmajor":
        e("s_lshr_b32 s%d, s2, 1" % s_pair)
        e("s_and_b32 s%d, s2, 1" % s_split)
    else:
        e("s_and_b32 s%d, s2, 127" % s_pair)
        e("s_lshr_b32 s%d, s2, 7" % s_split)
    if NW > 1:
        e("v_lshrrev_b32 v%d, 6, v0" % v_t0)
        e("v_and_b32 v%d, 63, v0" % v_lane)
        e("v_readfirstlane_b32 s%d, v%d" % (s_wave, v_t0))
    else:
        e("v_mov_b32 v%d, v0" % v_lane)
        e("s_mov_b32 s%d, 0" % s_wave)
    e("v_and_b32 v%d, 3, v%d" % (v_t0, v_lane))
    e("v_lshlrev_b32 v%d, 10, v%d" % (v_t0, v_t0))
    e("v_bfe_u32 v%d, v%d, 2, 2" % (v_t1, v_lane))
    e("v_lshl_add_u32 v%d, v%d, 8, v%d" % (v_t0, v_t1, v_t0))
    e("v_lshrrev_b32 v%d, 4, v%d" % (v_t2, v_lane))
    e("v_lshl_add_u32 v%d, v%d, 4, v%d" % (v_koff, v_t2, v_t0))
    e("v_lshlrev_b32 v%d, 4, v%d" % (v_voff, v_lane))
    e("v_and_b32 v%d, 1, v%d" % (v_t1, v_lane))
    e("v_lshlrev_b32 v%d, 8, v%d" % (v_t1, v_t1))
    e("v_lshl_add_u32 v%d, v%d, 4, v%d" % (v_t3, v_t2, v_t1))
    e("s_lshl_b32 s%d, s%d, 21" % (s_tmp, s_pair))
    e("s_mul_i32 s%d, s%d, %d" % (s_tmp2, s_split, IL * NW * 8192))
    e("s_add_u32 s%d, s%d, s%d" % (s_tmp, s_tmp, s_tmp2))
    e("s_lshl_b32 s%d, s%d, 13" % (s_ko, s_wave))
    e("s_add_u32 s%d, s%d, 4096" % (s_ko2, s_ko))
    e("s_mov_b32 s%d, 0" % s_ilc)
    e("s_mov_b32 s%d, %d" % (s_jA, TSTRIDE + JUMP))
    e("s_mov_b32 s%d, %d" % (s_jB, TSTRIDE))
    e("s_lshl_b32 s%d, s%d, 9" % (s_tmp2, s_pair))
    e("s_mov_b32 s%d, 0x00200000" % (SK + 2))
    e("s_mov_b32 s%d, 0x00020000" % (SK + 3))
    e("s_mov_b32 s%d, 0x00200000" % (SV + 2))
    e("s_mov_b32 s%d, 0x00020000" % (SV + 3))
    e("s_mov_b32 s%d, 512" % (SX + 2))
    e("s_mov_b32 s%d, 0x00020000" % (SX + 3))
    e("s_xor_b32 s%d, s%d, %d" % (s_role, s_wave, TW))
    e("s_or_b32 s%d, s%d, s%d" % (s_role, s_role, s_split))
    e("v_and_b32 v%d, 31, v%d" % (v_al, v_lane))
    e("v_lshlrev_b32 v%d, 3, v%d" % (v_al, v_al))
    e("v_lshrrev_b32 v%d, 5, v%d" % (v_mn, v_lane))
    e("v_lshl_add_u32 v%d, v%d, 8, v%d" % (v_arr, v_mn, v_al))
    e("v_bfe_u32 v%d, v%d, 3, 2" % (v_mn, v_lane))
    e("v_lshlrev_b32 v%d, 6, v%d" % (v_mn, v_mn))
    e("v_and_b32 v%d, 7, v%d" % (v_t0, v_lane))
    e("v_lshl_add_u32 v%d, v%d, 1, v%d" % (v_mn, v_t0, v_mn))
    e("s_waitcnt lgkmcnt(0)")
    e("s_add_u32 s%d, s%d, s%d" % (SK, kk, s_tmp))
    e("s_addc_u32 s%d, s%d, 0" % (SK + 1, kk + 1))
    e("s_add_u32 s%d, s%d, s%d" % (SV, kv, s_tmp))
    e("s_addc_u32 s%d, s%d, 0" % (SV + 1, kv + 1))
    e("s_add_u32 s%d, s%d, s%d" % (SX, kq, s_tmp2))
    e("s_addc_u32 s%d, s%d, 0" % (SX + 1, kq + 1))
    if ONESTREAM:
        e("s_cmp_eq_u32 s%d, 0" % s_split)
        e("s_cselect_b32 s%d, s%d, s%d" % (SK, kk, kv))
        e("s_cselect_b32 s%d, s%d, s%d" % (SK + 1, kk + 1, kv + 1))
        e("s_lshl_b32 s%d, s%d, 21" % (s_tmp, s_pair))
        e("s_add_u32 s%d, s%d, s%d" % (SK, SK, s_tmp))
        e("s_addc_u32 s%d, s%d, 0" % (SK + 1, SK + 1))
        e("s_add_u32 s%d, s%d, 8192" % (SV, SK))
        e("s_addc_u32 s%d, s%d, 0" % (SV + 1, SK + 1))
        e("s_mov_b32 s%d, 16384" % s_jA)
        e("s_mov_b32 s%d, 16384" % s_jB)
    if VSHIFT:
        e("s_add_u32 s%d, s%d, %d" % (SV, SV, VSHIFT))
        e("s_addc_u32 s%d, s%d, 0" % (SV + 1, SV + 1))
        e("s_sub_u32 s%d, s%d, %d" % (SV + 2, SV + 2, VSHIFT + 65536))

    def listK(b):
        return ["buffer_load_dwordx4 %s, v%d, s[%d:%d], s%d offen offset:%d %s" % (
                    kr(KB + 32 * b + 16 * t + 4 * j, 4), v_koff, SK, SK + 3, (s_ko, s_ko2)[t], 64 * j, KFLAGS)
                for t in range(2) for j in range(4)]
    def listV(b):
        return ["buffer_load_dwordx4 %s, v%d, s[%d:%d], s%d offen offset:%d %s" % (
                vr(VB + 32 * b + 4 * x, 4), v_voff, SV, SV + 3, (s_ko, s_ko2)[x >> 2], 1024 * (x & 3), VFLAGS) for x in range(8)]
    def loadK(b):
        for x in listK(b): e(x)
    def loadV(b):
        for x in listV(b): e(x)
    def loadQ():
        for j in range(4):
            e("buffer_load_dwordx4 %s, v%d, s[%d:%d], 0 offen offset:%d" % (vr(Q + 4 * j, 4), v_t3, SX, SX + 3, 64 * j))
    def advance():
        e("s_add_u32 s%d, s%d, 1" % (s_ilc, s_ilc))
        e("s_and_b32 s%d, s%d, %d" % (s_ilj, s_ilc, IL - 1))
        e("s_cmp_eq_u32 s%d, 0" % s_ilj)
        e("s_cselect_b32 s%d, s%d, s%d" % (s_ilj, s_jA, s_jB))
        e("s_add_u32 s%d, s%d, s%d" % (s_ko, s_ko, s_ilj))
        if L2TEST:
            e("s_and_b32 s%d, s%d, 0xffff" % (s_ko, s_ko))
        e("s_add_u32 s%d, s%d, 4096" % (s_ko2, s_ko))

    TQ = S
    e("s_cmp_lg_u32 s%d, 0" % s_role)
    e("s_cbranch_scc1 L_notree1")
    e("buffer_load_dwordx2 %s, v%d, s[%d:%d], 0 offen" % (vr(TQ, 2), v_arr, SX, SX + 3))
    e("s_lshl_b32 s%d, s%d, 8" % (s_tmp2, s_pair))
    e("s_add_u32 s%d, s%d, s%d" % (SP, kkt, s_tmp2))
    e("s_addc_u32 s%d, s%d, 0" % (SP + 1, kkt + 1))
    e("s_mov_b32 s%d, 256" % (SP + 2))
    e("s_mov_b32 s%d, 0x00020000" % (SP + 3))
    e("buffer_load_dwordx2 %s, v%d, s[%d:%d], 0 offen" % (vr(TQ + 2, 2), v_al, SP, SP + 3))
    e("s_add_u32 s%d, s%d, s%d" % (SP, kvt, s_tmp2))
    e("s_addc_u32 s%d, s%d, 0" % (SP + 1, kvt + 1))
    for r in range(4):
        e("buffer_load_ushort v%d, v%d, s[%d:%d], 0 offen offset:%d" % (TQ + 4 + r, v_mn, SP, SP + 3, 16 * r))
    e("s_mov_b32 s%d, s%d" % (SP, kmask))
    e("s_mov_b32 s%d, s%d" % (SP + 1, kmask + 1))
    e("s_mov_b32 s%d, 16" % (SP + 2))
    e("s_lshr_b32 s%d, s%d, 4" % (s_tmp2, s_pair))
    e("s_lshl_b32 s%d, s%d, 1" % (s_tmp2, s_tmp2))
    e("v_mov_b32 v%d, s%d" % (v_al, s_tmp2))
    e("buffer_load_ushort v%d, v%d, s[%d:%d], 0 offen" % (TQ + 8, v_al, SP, SP + 3))
    g.label("L_notree1")
    loadK(0); loadQ(); loadV(0); advance()
    for b in range(1, D):
        loadK(b); loadV(b); advance()
    e("s_mov_b32 s%d, 0x%08x" % (s_c, fbits(CSC)))
    e("s_mov_b32 s%d, 0x%08x" % (s_rc, fbits(1.0 / CSC)))
    e("s_mov_b32 s%d, 0x05040100" % s_sello)
    e("s_mov_b32 s%d, 0x07060302" % s_selhi)
    e("v_mov_b32 v%d, 0xff7fffff" % v_m)
    e("v_mov_b32 v%d, 0xff7fffff" % v_thr)
    e("v_mov_b32 v%d, 0" % v_l)
    for i in range(4):
        e("v_mov_b32 v%d, 0" % (LQ + i))
        e("v_mov_b32 v%d, 0x3f803f80" % (ONES + i))
    for i in range(32):
        e("v_mov_b32 v%d, 0" % (O + i))
    e("s_lshl_b32 s%d, s%d, 12" % (s_tmp, s_pair))
    e("s_add_u32 s%d, s%d, s%d" % (SP, kws, s_tmp))
    e("s_addc_u32 s%d, s%d, 0" % (SP + 1, kws + 1))
    e("s_mov_b32 s%d, 4096" % (SP + 2))
    e("s_mov_b32 s%d, 0x00020000" % (SP + 3))
    if NW > 1:
        e("s_cmp_lg_u32 s%d, 0" % s_wave)
        e("s_cbranch_scc1 L_noclear")
    e("v_cmp_eq_u32 vcc, 0, v%d" % v_lane)
    e("v_mov_b32 v%d, 0x7ffffff0" % v_t0)
    for i in range(4):
        e("v_mov_b32 v%d, -1" % (T + i))
    e("v_cndmask_b32 v%d, v%d, 0, vcc" % (v_aoff, v_t0))
    e("s_lshl_b32 s%d, s%d, 11" % (s_tmp, s_split))
    e("v_add_u32 v%d, 1024, v%d" % (v_t0, v_aoff))
    e("buffer_store_dwordx4 %s, v%d, s[%d:%d], s%d offen sc0 sc1" % (vr(T, 4), v_voff, SP, SP + 3, s_tmp))
    e("buffer_store_dwordx4 %s, v%d, s[%d:%d], s%d offen sc0 sc1" % (vr(T, 4), v_t0, SP, SP + 3, s_tmp))
    e("s_mov_b32 s%d, s%d" % (SD, kdbg))
    e("s_mov_b32 s%d, s%d" % (SD + 1, kdbg + 1))
    e("s_mov_b32 s%d, 256" % (SD + 2))
    e("s_mov_b32 s%d, 0x00020000" % (SD + 3))
    g.label("L_noclear")
    e("s_cmp_lg_u32 s%d, 0" % s_role)
    e("s_cbranch_scc1 L_notree2")
    e("s_waitcnt vmcnt(%d)" % (16 * D + 4 + (2 if TW == 0 else 0)))
    e("v_lshlrev_b32 v%d, 16, v%d" % (v_t0, TQ))
    e("v_lshlrev_b32 v%d, 16, v%d" % (v_t1, TQ + 2))
    e("v_mul_f32 v%d, v%d, v%d" % (v_t2, v_t0, v_t1))
    e("v_and_b32 v%d, 0xffff0000, v%d" % (v_t0, TQ))
    e("v_and_b32 v%d, 0xffff0000, v%d" % (v_t1, TQ + 2))
    e("v_fma_f32 v%d, v%d, v%d, v%d" % (v_t2, v_t0, v_t1, v_t2))
    e("v_lshlrev_b32 v%d, 16, v%d" % (v_t0, TQ + 1))
    e("v_lshlrev_b32 v%d, 16, v%d" % (v_t1, TQ + 3))
    e("v_fma_f32 v%d, v%d, v%d, v%d" % (v_t2, v_t0, v_t1, v_t2))
    e("v_and_b32 v%d, 0xffff0000, v%d" % (v_t0, TQ + 1))
    e("v_and_b32 v%d, 0xffff0000, v%d" % (v_t1, TQ + 3))
    e("v_fma_f32 v%d, v%d, v%d, v%d" % (v_t2, v_t0, v_t1, v_t2))
    for sh in (8, 4, 2, 1):
        e("s_nop 1")
        e("v_add_f32_dpp v%d, v%d, v%d row_ror:%d row_mask:0xf bank_mask:0xf" % (v_t2, v_t2, v_t2, sh))
    e("v_mov_b32 v%d, v%d" % (v_t1, v_t2))
    e("s_nop 1")
    e("v_permlane16_swap_b32 v%d, v%d" % (v_t2, v_t1))
    e("v_add_f32 v%d, v%d, v%d" % (v_t2, v_t2, v_t1))
    e("v_lshlrev_b32 v%d, 16, v%d" % (v_t1, TQ + 8))
    e("v_sub_f32 v%d, 1.0, v%d" % (v_t1, v_t1))
    e("v_mul_f32 v%d, 0xceabfb8f, v%d" % (v_t1, v_t1))
    e("v_fma_f32 v%d, v%d, s%d, v%d" % (v_t0, v_t2, s_c, v_t1))
    e("v_mov_b32 v%d, 1.0" % v_t1)
    for r in range(4):
        e("v_lshlrev_b32 v%d, 16, v%d" % (TQ + 4 + r, TQ + 4 + r))
    e("v_lshrrev_b32 v%d, 5, v%d" % (v_t2, v_lane))
    e("v_lshlrev_b32 v%d, 3, v%d" % (v_t2, v_t2))
    e("ds_write_b128 v%d, %s offset:%d" % (v_voff, vr(TQ + 4, 4), 1024 * NW))
    e("ds_write_b64 v%d, %s offset:%d" % (v_t2, vr(v_t0, 2), LML + 16 * NW))
    e("s_waitcnt lgkmcnt(0)")
    g.label("L_notree2")
    if STAMPS:
        e("s_waitcnt vmcnt(%d)" % (16 * D - 8))
        e("s_memrealtime s[50:51]")

    rare_blocks = []
    def body(b, pref, wk, wv, tag):
        e("s_waitcnt vmcnt(%d)" % wk)
        for j in range(4):
            for t in range(2):
                c = "0" if j == 0 else vr(S + 4 * t, 4)
                e("v_mfma_f32_16x16x32_bf16 %s, %s, %s, %s" % (vr(S + 4 * t, 4), kr(KB + 32 * b + 16 * t + 4 * j, 4), vr(Q + 4 * j, 4), c))
        kl = listK(b) if pref else []
        if pref and not SPREAD:
            loadK(b)
            kl = []
        elif pref and SPREAD:
            e(kl.pop(0)); e(kl.pop(0))
            e("s_nop 5")
        else:
            e("s_nop 7")
        e("v_max3_f32 v%d, v%d, v%d, v%d" % (v_t0, S, S + 1, S + 2))
        e("v_max3_f32 v%d, v%d, v%d, v%d" % (v_t1, S + 3, S + 4, S + 5))
        e("v_max3_f32 v%d, v%d, v%d, v%d" % (v_t0, v_t0, S + 6, S + 7))
        e("v_max_f32 v%d, v%d, v%d" % (v_t0, v_t0, v_t1))
        e("v_cmp_gt_f32 vcc, v%d, v%d" % (v_t0, v_thr))
        e("s_cbranch_vccnz L_rare_%s" % tag)
        g.label("L_back_%s" % tag)
        rare_blocks.append(tag)
        for i in range(8):
            e("v_fma_f32 v%d, v%d, s%d, -v%d" % (S + i, S + i, s_c, v_m))
            if kl and i % 4 == 3: e(kl.pop(0))
        for i in range(8):
            e("v_exp_f32 v%d, v%d" % (S + i, S + i))
            if kl and i % 2 == 1: e(kl.pop(0))
        for y in range(4):
            e("v_cvt_pk_bf16_f32 v%d, v%d, v%d" % (P + y, S + 2 * y, S + 2 * y + 1))
        while kl: e(kl.pop(0))
        e("s_waitcnt vmcnt(%d)" % wv)
        def perm(i):
            sel = s_selhi if (i & 1) else s_sello
            for y in range(4):
                lo = VB + 32 * b + 4 * (2 * y) + (i >> 1)
                hi = VB + 32 * b + 4 * (2 * y + 1) + (i >> 1)
                e("v_perm_b32 v%d, v%d, v%d, s%d" % (T + 4 * (i % 3) + y, hi, lo, sel))
        def pv(i):
            e("v_mfma_f32_16x16x32_bf16 %s, %s, %s, %s" % (vr(O + 4 * i, 4), vr(T + 4 * (i % 3), 4), vr(P, 4), vr(O + 4 * i, 4)))
        perm(0)
        e("v_mfma_f32_16x16x32_bf16 %s, %s, %s, %s" % (vr(LQ, 4), vr(ONES, 4), vr(P, 4), vr(LQ, 4)))
        for i in range(8):
            if i + 1 < 8:
                perm(i + 1)
            else:
                e("s_nop 1")
            pv(i)
        if pref:
            loadV(b)
            advance()

    NLOOP = (NT - D) // D
    R = (NT - D) % D
    W = 16 * D - 8
    e("s_mov_b32 s%d, %d" % (s_cnt, NLOOP))
    g.label("L_loop")
    for b in range(D):
        body(b, True, W, W, "m%d" % b)
    if TL:
        e("s_memrealtime s[72:73]")
        e("s_waitcnt lgkmcnt(0)")
        e("s_and_b32 m0, s%d, 63" % s_cnt)
        e("s_nop 1")
        e("v_writelane_b32 v%d, s72, m0" % v_tl)
    e("s_sub_u32 s%d, s%d, 1" % (s_cnt, s_cnt))
    e("s_cmp_lg_u32 s%d, 0" % s_cnt)
    e("s_cbranch_scc1 L_loop")
    def arrival():
        if NW > 1:
            e("s_cmp_lg_u32 s%d, 0" % s_wave)
            e("s_cbranch_scc1 L_noarr")
        e("s_and_b32 s%d, s%d, 1" % (s_shift, s_pair))
        e("s_lshl_b32 s%d, s%d, 4" % (s_shift, s_shift))
        e("s_lshl_b32 s%d, 1, s%d" % (s_tmp, s_shift))
        e("v_mov_b32 v%d, s%d" % (v_arr, s_tmp))
        e("s_lshr_b32 s%d, s%d, 1" % (s_tmp, s_pair))
        e("s_lshl_b32 s%d, s%d, 2" % (s_tmp, s_tmp))
        e("v_add_u32 v%d, s%d, v%d" % (v_t0, s_tmp, v_aoff))
        e("buffer_atomic_add v%d, v%d, s[%d:%d], 0 offen sc0" % (v_arr, v_t0, SD, SD + 3))
        g.label("L_noarr")
    q = []
    for b in range(D):
        q += [("K", b), ("V", b)]
    for k in range(R + D):
        if k == R:
            arrival()
        b = k % D
        pref = k < R
        i = q.index(("K", b))
        wk = 8 * (len(q) - 1 - i)
        q = q[i + 1:]
        if pref:
            q.append(("K", b))
        i = q.index(("V", b))
        wv = 8 * (len(q) - 1 - i)
        q = q[i + 1:]
        if pref:
            q.append(("V", b))
        body(b, pref, wk, wv, "e%d" % k)
    if TL:
        e("s_memrealtime s[72:73]")
        e("s_waitcnt lgkmcnt(0)")
        e("v_writelane_b32 v%d, s72, 0" % v_tl)
        e("v_writelane_b32 v%d, s48, 63" % v_tl)
        e("v_writelane_b32 v%d, s50, 62" % v_tl)
        e("s_mul_i32 s72, s2, %d" % NW)
        e("s_add_u32 s72, s72, s%d" % s_wave)
        e("s_lshl_b32 s72, s72, 8")
        e("s_add_u32 s72, s72, 0x20100000")
        e("s_add_u32 s76, s40, s72")
        e("s_addc_u32 s77, s41, 0")
        e("s_mov_b32 s78, 256")
        e("s_mov_b32 s79, 0x00020000")
        e("v_lshlrev_b32 v%d, 2, v%d" % (v_t0, v_lane))
        e("buffer_store_dword v%d, v%d, s[76:79], 0 offen" % (v_tl, v_t0))
    if NW > 1:
        e("s_cmp_lg_u32 s%d, 0" % s_wave)
        e("s_cbranch_scc1 L_lds")
    e("v_readfirstlane_b32 s%d, v%d" % (s_role, v_arr))
    e("s_xor_b32 s%d, s%d, 1" % (s_tmp, s_split))
    e("s_lshl_b32 s%d, s%d, 11" % (s_tmp, s_tmp))
    e("s_lshr_b32 s%d, s%d, s%d" % (s_role, s_role, s_shift))
    e("s_and_b32 s%d, s%d, 1" % (s_role, s_role))
    e("s_cmp_eq_u32 s%d, 0" % s_role)
    e("s_cbranch_scc1 L_lds")
    e("v_lshrrev_b32 v%d, 5, v%d" % (v_t3, v_lane))
    e("v_lshlrev_b32 v%d, 3, v%d" % (v_t3, v_t3))
    e("buffer_load_dwordx4 %s, v%d, s[%d:%d], s%d offen sc0 sc1" % (vr(PO, 4), v_voff, SP, SP + 3, s_tmp))
    e("buffer_load_dwordx2 %s, v%d, s[%d:%d], s%d offen offset:1024 sc0 sc1" % (vr(PML, 2), v_t3, SP, SP + 3, s_tmp))
    g.label("L_lds")
    e("v_and_b32 v%d, 1, v%d" % (v_t0, v_lane))
    e("v_lshrrev_b32 v%d, 4, v%d" % (v_t1, v_lane))
    e("v_lshlrev_b32 v%d, 9, v%d" % (v_t2, v_t0))
    e("v_lshl_add_u32 v%d, v%d, 7, v%d" % (v_t2, v_t1, v_t2))
    e("s_lshl_b32 s%d, s%d, 10" % (s_tmp2, s_wave))
    e("v_add_u32 v%d, s%d, v%d" % (v_t2, s_tmp2, v_t2))
    e("s_lshl_b32 s%d, s%d, 4" % (s_tmp2, s_wave))
    e("s_add_u32 s%d, s%d, %d" % (s_tmp2, s_tmp2, LML))
    e("v_lshlrev_b32 v%d, 3, v%d" % (v_t0, v_t0))
    e("v_add_u32 v%d, s%d, v%d" % (v_t0, s_tmp2, v_t0))
    e("v_mov_b32 v%d, v%d" % (v_l, LQ))
    e("s_mov_b32 exec_lo, 0x00030003")
    e("s_mov_b32 exec_hi, 0x00030003")
    for i in range(8):
        e("ds_write_b128 v%d, %s offset:%d" % (v_t2, vr(O + 4 * i, 4), 16 * i))
    e("ds_write_b64 v%d, %s" % (v_t0, vr(v_m, 2)))
    e("s_mov_b64 exec, -1")
    e("s_waitcnt lgkmcnt(0)")
    if NW > 1:
        e("s_barrier")
        e("s_cmp_lg_u32 s%d, 0" % s_wave)
        e("s_cbranch_scc1 L_end")
    if STAMPS:
        e("s_memrealtime s[52:53]")
    A = XB
    ML = XB + 4 * NP
    if ML & 1: ML += 1
    e("v_lshrrev_b32 v%d, 5, v%d" % (v_t1, v_lane))
    e("v_lshlrev_b32 v%d, 3, v%d" % (v_t1, v_t1))
    for w in range(NP):
        e("ds_read_b64 %s, v%d offset:%d" % (vr(ML + 2 * w, 2), v_t1, LML + 16 * w))
    e("v_lshrrev_b32 v%d, 3, v%d" % (v_t2, v_lane))
    e("v_lshlrev_b32 v%d, 7, v%d" % (v_t2, v_t2))
    e("v_and_b32 v%d, 1, v%d" % (v_t3, v_lane))
    e("v_lshl_add_u32 v%d, v%d, 6, v%d" % (v_t2, v_t3, v_t2))
    e("v_bfe_u32 v%d, v%d, 1, 2" % (v_t3, v_lane))
    e("v_lshl_add_u32 v%d, v%d, 2, v%d" % (v_t2, v_t3, v_t2))
    for w in range(NP):
        for u in range(4):
            e("ds_read_b32 v%d, v%d offset:%d" % (A + 4 * w + u, v_t2, 1024 * w + 16 * u))
    e("s_cmp_eq_u32 s%d, 0" % s_split)
    e("s_waitcnt lgkmcnt(0)")
    e("s_cbranch_scc1 L_has_tree")
    e("v_mov_b32 v%d, 0xff7fffff" % (ML + 2 * NW))
    e("v_mov_b32 v%d, 0" % (ML + 2 * NW + 1))
    for r in range(4):
        e("v_mov_b32 v%d, 0" % (A + 4 * NW + r))
    g.label("L_has_tree")
    e("v_max_f32 v%d, v%d, v%d" % (v_m, ML, ML + 2))
    for w in range(2, NP):
        e("v_max_f32 v%d, v%d, v%d" % (v_m, v_m, ML + 2 * w))
    for w in range(NP):
        e("v_sub_f32 v%d, v%d, v%d" % (ML + 2 * w, ML + 2 * w, v_m))
    for w in range(NP):
        e("v_exp_f32 v%d, v%d" % (ML + 2 * w, ML + 2 * w))
    e("s_nop 0")
    e("v_mul_f32 v%d, v%d, v%d" % (v_l, ML, ML + 1))
    for r in range(4):
        e("v_mul_f32 v%d, v%d, v%d" % (O + r, A + r, ML))
    for w in range(1, NP):
        e("v_fma_f32 v%d, v%d, v%d, v%d" % (v_l, ML + 2 * w, ML + 2 * w + 1, v_l))
        for r in range(4):
            e("v_fma_f32 v%d, v%d, v%d, v%d" % (O + r, A + 4 * w + r, ML + 2 * w, O + r))
    e("s_cmp_lg_u32 s%d, 0" % s_role)
    e("s_cbranch_scc1 L_combine")
    for r in range(4):
        e("v_min_u32 v%d, 0xfffffffe, v%d" % (O + r, O + r))
    e("v_min_u32 v%d, 0xfffffffe, v%d" % (v_m, v_m))
    e("v_min_u32 v%d, 0xfffffffe, v%d" % (v_l, v_l))
    e("s_lshl_b32 s%d, s%d, 11" % (s_tmp, s_split))
    e("buffer_store_dwordx4 %s, v%d, s[%d:%d], s%d offen sc0 sc1" % (vr(O, 4), v_voff, SP, SP + 3, s_tmp))
    e("buffer_store_dwordx2 %s, v%d, s[%d:%d], s%d offen offset:1024 sc0 sc1" % (vr(v_m, 2), v_t1, SP, SP + 3, s_tmp))
    e("s_branch L_fin")
    g.label("L_combine")
    e("s_mov_b32 s%d, 0x100000" % s_cnt)
    e("s_waitcnt vmcnt(0)")
    g.label("L_check")
    e("v_max3_u32 v%d, v%d, v%d, v%d" % (v_t0, PO, PO + 1, PO + 2))
    e("v_max3_u32 v%d, v%d, v%d, v%d" % (v_t0, v_t0, PO + 3, PML))
    e("v_max_u32 v%d, v%d, v%d" % (v_t0, v_t0, PML + 1))
    e("v_cmp_eq_u32 vcc, -1, v%d" % v_t0)
    e("s_cbranch_vccz L_valid")
    e("s_sub_u32 s%d, s%d, 1" % (s_cnt, s_cnt))
    e("s_cbranch_scc1 L_valid")
    e("s_xor_b32 s%d, s%d, 1" % (s_tmp, s_split))
    e("s_lshl_b32 s%d, s%d, 11" % (s_tmp, s_tmp))
    e("buffer_load_dwordx4 %s, v%d, s[%d:%d], s%d offen sc0 sc1" % (vr(PO, 4), v_voff, SP, SP + 3, s_tmp))
    e("buffer_load_dwordx2 %s, v%d, s[%d:%d], s%d offen offset:1024 sc0 sc1" % (vr(PML, 2), v_t1, SP, SP + 3, s_tmp))
    e("s_waitcnt vmcnt(0)")
    e("s_branch L_check")
    g.label("L_valid")
    e("v_max_f32 v%d, v%d, v%d" % (v_t0, v_m, PML))
    e("v_sub_f32 v%d, v%d, v%d" % (v_t2, v_m, v_t0))
    e("v_sub_f32 v%d, v%d, v%d" % (v_t3, PML, v_t0))
    e("v_exp_f32 v%d, v%d" % (v_t2, v_t2))
    e("v_exp_f32 v%d, v%d" % (v_t3, v_t3))
    e("s_lshl_b32 s%d, s%d, 9" % (s_tmp, s_pair))
    e("s_add_u32 s%d, s%d, s%d" % (SX, kout, s_tmp))
    e("s_addc_u32 s%d, s%d, 0" % (SX + 1, kout + 1))
    e("v_mul_f32 v%d, v%d, v%d" % (v_l, v_l, v_t2))
    e("v_fma_f32 v%d, v%d, v%d, v%d" % (v_l, PML + 1, v_t3, v_l))
    e("v_rcp_f32 v%d, v%d" % (v_l, v_l))
    for r in range(4):
        e("v_mul_f32 v%d, v%d, v%d" % (O + r, O + r, v_t2))
    for r in range(4):
        e("v_fma_f32 v%d, v%d, v%d, v%d" % (O + r, PO + r, v_t3, O + r))
    e("v_lshlrev_b32 v%d, 3, v%d" % (v_t0, v_lane))
    for r in range(4):
        e("v_mul_f32 v%d, v%d, v%d" % (O + r, O + r, v_l))
    e("v_cvt_pk_bf16_f32 v%d, v%d, v%d" % (P, O, O + 1))
    e("v_cvt_pk_bf16_f32 v%d, v%d, v%d" % (P + 1, O + 2, O + 3))
    e("buffer_store_dwordx2 %s, v%d, s[%d:%d], 0 offen %s" % (vr(P, 2), v_t0, SX, SX + 3, OFLAGS))
    g.label("L_fin")
    if STAMPS:
        e("s_waitcnt vmcnt(0)")
        e("s_memrealtime s[54:55]")
        e("s_getreg_b32 s68, hwreg(HW_REG_XCC_ID)")
        e("s_getreg_b32 s69, hwreg(HW_REG_HW_ID)")
        e("s_lshl_b32 s44, s2, 6")
        e("s_add_u32 s44, s44, 0x20000000")
        e("s_add_u32 s16, s40, s44")
        e("s_addc_u32 s17, s41, 0")
        e("s_mov_b32 s18, 64")
        e("s_mov_b32 s19, 0x00020000")
        e("s_waitcnt lgkmcnt(0)")
        for i in range(8):
            e("v_mov_b32 v%d, s%d" % (32 + i, 48 + i))
        e("v_mov_b32 v40, s68")
        e("v_mov_b32 v41, s69")
        e("v_mov_b32 v10, 0")
        e("s_mov_b64 exec, 1")
        e("buffer_store_dwordx4 v[32:35], v10, s[16:19], 0 offen")
        e("buffer_store_dwordx4 v[36:39], v10, s[16:19], 0 offen offset:16")
        e("buffer_store_dwordx2 v[40:41], v10, s[16:19], 0 offen offset:32")
    g.label("L_end")
    e("s_endpgm")
    for tag in rare_blocks:
        g.label("L_rare_%s" % tag)
        e("v_mov_b32 v%d, v%d" % (v_t1, v_t0))
        e("s_nop 1")
        e("v_permlane32_swap_b32 v%d, v%d" % (v_t0, v_t1))
        e("v_max_f32 v%d, v%d, v%d" % (v_t0, v_t0, v_t1))
        e("v_mov_b32 v%d, v%d" % (v_t1, v_t0))
        e("s_nop 1")
        e("v_permlane16_swap_b32 v%d, v%d" % (v_t0, v_t1))
        e("v_max_f32 v%d, v%d, v%d" % (v_t0, v_t0, v_t1))
        e("v_mul_f32 v%d, s%d, v%d" % (v_t0, s_c, v_t0))
        e("v_max_f32 v%d, v%d, v%d" % (v_mn, v_m, v_t0))
        e("v_sub_f32 v%d, v%d, v%d" % (v_t1, v_m, v_mn))
        e("v_exp_f32 v%d, v%d" % (v_al, v_t1))
        e("v_mov_b32 v%d, v%d" % (v_m, v_mn))
        e("v_add_f32 v%d, 0x%08x, v%d" % (v_thr, fbits(THR), v_mn))
        e("v_mul_f32 v%d, s%d, v%d" % (v_thr, s_rc, v_thr))
        for i in range(4):
            e("v_mul_f32 v%d, v%d, v%d" % (LQ + i, LQ + i, v_al))
        for i in range(32):
            e("v_mul_f32 v%d, v%d, v%d" % (O + i, O + i, v_al))
        e("s_branch L_back_%s" % tag)
    txt = g.text()

    lds = max(LDS, LML + 16 * NP)
    nv = (VEND + 7) // 8 * 8
    acc_off = nv
    if KACC: nv = nv + 32 * D
    out = HEADER
    out += "; @launch grid=(%d,1,1) block=(%d,1,1) lds=%d\n" % (NWG, 64 * NW, lds)
    out += '.amdgcn_target "amdgcn-amd-amdhsa--gfx950"\n.text\n.globl %s_kernel\n.p2align 8\n.type %s_kernel,@function\n%s_kernel:\n' % (NAME, NAME, NAME)
    out += txt
    out += """.section .rodata,"a"
.p2align 6
.amdhsa_kernel %s_kernel
  .amdhsa_next_free_vgpr %d
  .amdhsa_next_free_sgpr 80
  .amdhsa_accum_offset %d
  .amdhsa_group_segment_fixed_size 0
  .amdhsa_kernarg_size 72
  .amdhsa_user_sgpr_count 2
  .amdhsa_user_sgpr_kernarg_segment_ptr 1
  .amdhsa_system_sgpr_workgroup_id_x 1
.end_amdhsa_kernel
""" % (NAME, nv, acc_off)
    return out

if __name__ == "__main__":
    ap = argparse.ArgumentParser()
    ap.add_argument("-o", required=True)
    ap.add_argument("--nw", type=int, default=1)
    ap.add_argument("--depth", type=int, default=3)
    ap.add_argument("--il", type=int, default=8)
    ap.add_argument("--map", default="splitmajor")
    ap.add_argument("--kflags", default="nt")
    ap.add_argument("--vflags", default="nt")
    ap.add_argument("--stamps", action="store_true")
    ap.add_argument("--nokacc", action="store_true")
    ap.add_argument("--oflags", default="")
    ap.add_argument("--lds", type=int, default=90000)
    ap.add_argument("--thr", type=float, default=8.0)
    ap.add_argument("--tl", action="store_true")
    ap.add_argument("--onestream", action="store_true")
    ap.add_argument("--vshift", type=int, default=0)
    ap.add_argument("--l2test", action="store_true")
    ap.add_argument("--spread", type=int, default=0)
    a = ap.parse_args()
    open(a.o, "w").write(gen(NW=a.nw, D=a.depth, IL=a.il, MAP=a.map, KFLAGS=a.kflags, VFLAGS=a.vflags, STAMPS=a.stamps, KACC=not a.nokacc, OFLAGS=a.oflags, LDS=a.lds, THR=a.thr, TL=a.tl, SPREAD=a.spread, L2TEST=a.l2test, ONESTREAM=a.onestream, VSHIFT=a.vshift))
```

```python
import sys, argparse
from gen1 import NAME, HEADER, Gen, vr, sr

DOC = """    ; ---------------------------------------------------------------------------------------------
    ; ---------------------------------------------------------------------------------------------
"""

def gen(NW=1, D=3, IL=8, MAP="splitmajor", KFLAGS="nt", VFLAGS="nt", STAMPS=False, LDS=90000, KACC=True, OFLAGS="", THR=8.0, LMFMA=True, LAZY=True, TL=False, SPREAD=0, L2TEST=False, ONESTREAM=False, VSHIFT=0):
    import struct
    def fbits(x): return struct.unpack("<I", struct.pack("<f", x))[0]
    g = Gen()
    e = g.e
    NSPLIT = 2
    NWG = 256
    NT = 8192 // NSPLIT // 32 // NW
    TSTRIDE = NW * 8192
    JUMP = (NSPLIT - 1) * IL * NW * 8192
    TW = 1 if NW > 1 else 0
    CSC = 128 ** -0.5 * 1.4426950408889634
    v_koff = 1
    v_voff = 2
    v_lane = 3
    v_m = 4
    v_l = 5
    v_t0 = 6
    v_t1 = 7
    v_al = 8
    v_mn = 9
    v_t2 = 10
    v_t3 = 11
    v_arr = 12
    v_aoff = 13
    PO = 14
    PML = 18
    v_thr = 20
    v_tl = 21
    LQ = 24
    ONES = 28
    Q = 32
    S = Q + 16
    P = S + 8
    T = P + 4
    O = T + 12
    if KACC:
        VB = O + 32
        KB = 0
        VEND = VB + 32 * D
        XB = VB
    else:
        KB = O + 32
        VB = KB + 32 * D
        VEND = VB + 32 * D
        XB = KB
    def kr(base, n):
        return ("a[%d:%d]" if KACC else "v[%d:%d]") % (base, base + n - 1)
    s_pair = 3
    s_split = 4
    s_wave = 5
    s_c = 6
    s_sello = 7
    SK = 8
    SV = 12
    SX = 16
    s_ko = 20
    s_ko2 = 21
    s_cnt = 22
    s_selhi = 23
    s_ptr = 24
    s_tmp = 44
    s_tmp2 = 45
    s_ilc = 46
    s_ilj = 47
    SP = 56
    s_role = 60
    s_shift = 61
    s_jA = 62
    s_jB = 63
    SD = 64
    s_rc = 70
    kq, kk, kv, kkt, kvt, kmask, kout, kdbg, kws = [s_ptr + 2 * i for i in range(9)]
    NP = NW + 1
    LML = NP * 1024

    e("s_cmp_ge_u32 s2, %d" % NWG)
    e("s_cbranch_scc1 L_end")
    e("s_load_dwordx16 s[24:39], s[0:1], 0")
    e("s_load_dwordx2 s[40:41], s[0:1], 64")
    if STAMPS:
        e("s_memrealtime s[48:49]")
    if MAP == "pairmajor":
        e("s_lshr_b32 s%d, s2, 1" % s_pair)
        e("s_and_b32 s%d, s2, 1" % s_split)
    else:
        e("s_and_b32 s%d, s2, 127" % s_pair)
        e("s_lshr_b32 s%d, s2, 7" % s_split)
    if NW > 1:
        e("v_lshrrev_b32 v%d, 6, v0" % v_t0)
        e("v_and_b32 v%d, 63, v0" % v_lane)
        e("v_readfirstlane_b32 s%d, v%d" % (s_wave, v_t0))
    else:
        e("v_mov_b32 v%d, v0" % v_lane)
        e("s_mov_b32 s%d, 0" % s_wave)
    e("v_and_b32 v%d, 3, v%d" % (v_t0, v_lane))
    e("v_lshlrev_b32 v%d, 10, v%d" % (v_t0, v_t0))
    e("v_bfe_u32 v%d, v%d, 2, 2" % (v_t1, v_lane))
    e("v_lshl_add_u32 v%d, v%d, 8, v%d" % (v_t0, v_t1, v_t0))
    e("v_lshrrev_b32 v%d, 4, v%d" % (v_t2, v_lane))
    e("v_lshl_add_u32 v%d, v%d, 4, v%d" % (v_koff, v_t2, v_t0))
    e("v_lshlrev_b32 v%d, 4, v%d" % (v_voff, v_lane))
    e("v_and_b32 v%d, 1, v%d" % (v_t1, v_lane))
    e("v_lshlrev_b32 v%d, 8, v%d" % (v_t1, v_t1))
    e("v_lshl_add_u32 v%d, v%d, 4, v%d" % (v_t3, v_t2, v_t1))
    e("s_lshl_b32 s%d, s%d, 21" % (s_tmp, s_pair))
    e("s_mul_i32 s%d, s%d, %d" % (s_tmp2, s_split, IL * NW * 8192))
    e("s_add_u32 s%d, s%d, s%d" % (s_tmp, s_tmp, s_tmp2))
    e("s_lshl_b32 s%d, s%d, 13" % (s_ko, s_wave))
    e("s_add_u32 s%d, s%d, 4096" % (s_ko2, s_ko))
    e("s_mov_b32 s%d, 0" % s_ilc)
    e("s_mov_b32 s%d, %d" % (s_jA, TSTRIDE + JUMP))
    e("s_mov_b32 s%d, %d" % (s_jB, TSTRIDE))
    e("s_lshl_b32 s%d, s%d, 9" % (s_tmp2, s_pair))
    e("s_mov_b32 s%d, 0x00200000" % (SK + 2))
    e("s_mov_b32 s%d, 0x00020000" % (SK + 3))
    e("s_mov_b32 s%d, 0x00200000" % (SV + 2))
    e("s_mov_b32 s%d, 0x00020000" % (SV + 3))
    e("s_mov_b32 s%d, 512" % (SX + 2))
    e("s_mov_b32 s%d, 0x00020000" % (SX + 3))
    e("s_xor_b32 s%d, s%d, %d" % (s_role, s_wave, TW))
    e("s_or_b32 s%d, s%d, s%d" % (s_role, s_role, s_split))
    e("v_and_b32 v%d, 31, v%d" % (v_al, v_lane))
    e("v_lshlrev_b32 v%d, 3, v%d" % (v_al, v_al))
    e("v_lshrrev_b32 v%d, 5, v%d" % (v_mn, v_lane))
    e("v_lshl_add_u32 v%d, v%d, 8, v%d" % (v_arr, v_mn, v_al))
    e("v_bfe_u32 v%d, v%d, 3, 2" % (v_mn, v_lane))
    e("v_lshlrev_b32 v%d, 6, v%d" % (v_mn, v_mn))
    e("v_and_b32 v%d, 7, v%d" % (v_t0, v_lane))
    e("v_lshl_add_u32 v%d, v%d, 1, v%d" % (v_mn, v_t0, v_mn))
    e("s_waitcnt lgkmcnt(0)")
    e("s_add_u32 s%d, s%d, s%d" % (SK, kk, s_tmp))
    e("s_addc_u32 s%d, s%d, 0" % (SK + 1, kk + 1))
    e("s_add_u32 s%d, s%d, s%d" % (SV, kv, s_tmp))
    e("s_addc_u32 s%d, s%d, 0" % (SV + 1, kv + 1))
    e("s_add_u32 s%d, s%d, s%d" % (SX, kq, s_tmp2))
    e("s_addc_u32 s%d, s%d, 0" % (SX + 1, kq + 1))
    if ONESTREAM:
        e("s_cmp_eq_u32 s%d, 0" % s_split)
        e("s_cselect_b32 s%d, s%d, s%d" % (SK, kk, kv))
        e("s_cselect_b32 s%d, s%d, s%d" % (SK + 1, kk + 1, kv + 1))
        e("s_lshl_b32 s%d, s%d, 21" % (s_tmp, s_pair))
        e("s_add_u32 s%d, s%d, s%d" % (SK, SK, s_tmp))
        e("s_addc_u32 s%d, s%d, 0" % (SK + 1, SK + 1))
        e("s_add_u32 s%d, s%d, 8192" % (SV, SK))
        e("s_addc_u32 s%d, s%d, 0" % (SV + 1, SK + 1))
        e("s_mov_b32 s%d, 16384" % s_jA)
        e("s_mov_b32 s%d, 16384" % s_jB)
    if VSHIFT:
        e("s_add_u32 s%d, s%d, %d" % (SV, SV, VSHIFT))
        e("s_addc_u32 s%d, s%d, 0" % (SV + 1, SV + 1))
        e("s_sub_u32 s%d, s%d, %d" % (SV + 2, SV + 2, VSHIFT + 65536))

    def listK(b):
        return ["buffer_load_dwordx4 %s, v%d, s[%d:%d], s%d offen offset:%d %s" % (
                    kr(KB + 32 * b + 16 * t + 4 * j, 4), v_koff, SK, SK + 3, (s_ko, s_ko2)[t], 64 * j, KFLAGS)
                for t in range(2) for j in range(4)]
    def listV(b):
        return ["buffer_load_dwordx4 %s, v%d, s[%d:%d], s%d offen offset:%d %s" % (
                vr(VB + 32 * b + 4 * x, 4), v_voff, SV, SV + 3, (s_ko, s_ko2)[x >> 2], 1024 * (x & 3), VFLAGS) for x in range(8)]
    def loadK(b):
        for x in listK(b): e(x)
    def loadV(b):
        for x in listV(b): e(x)
    def loadQ():
        for j in range(4):
            e("buffer_load_dwordx4 %s, v%d, s[%d:%d], 0 offen offset:%d" % (vr(Q + 4 * j, 4), v_t3, SX, SX + 3, 64 * j))
    def advance():
        e("s_add_u32 s%d, s%d, 1" % (s_ilc, s_ilc))
        e("s_and_b32 s%d, s%d, %d" % (s_ilj, s_ilc, IL - 1))
        e("s_cmp_eq_u32 s%d, 0" % s_ilj)
        e("s_cselect_b32 s%d, s%d, s%d" % (s_ilj, s_jA, s_jB))
        e("s_add_u32 s%d, s%d, s%d" % (s_ko, s_ko, s_ilj))
        if L2TEST:
            e("s_and_b32 s%d, s%d, 0xffff" % (s_ko, s_ko))
        e("s_add_u32 s%d, s%d, 4096" % (s_ko2, s_ko))

    TQ = S
    e("s_cmp_lg_u32 s%d, 0" % s_role)
    e("s_cbranch_scc1 L_notree1")
    e("buffer_load_dwordx2 %s, v%d, s[%d:%d], 0 offen" % (vr(TQ, 2), v_arr, SX, SX + 3))
    e("s_lshl_b32 s%d, s%d, 8" % (s_tmp2, s_pair))
    e("s_add_u32 s%d, s%d, s%d" % (SP, kkt, s_tmp2))
    e("s_addc_u32 s%d, s%d, 0" % (SP + 1, kkt + 1))
    e("s_mov_b32 s%d, 256" % (SP + 2))
    e("s_mov_b32 s%d, 0x00020000" % (SP + 3))
    e("buffer_load_dwordx2 %s, v%d, s[%d:%d], 0 offen" % (vr(TQ + 2, 2), v_al, SP, SP + 3))
    e("s_add_u32 s%d, s%d, s%d" % (SP, kvt, s_tmp2))
    e("s_addc_u32 s%d, s%d, 0" % (SP + 1, kvt + 1))
    for r in range(4):
        e("buffer_load_ushort v%d, v%d, s[%d:%d], 0 offen offset:%d" % (TQ + 4 + r, v_mn, SP, SP + 3, 16 * r))
    e("s_mov_b32 s%d, s%d" % (SP, kmask))
    e("s_mov_b32 s%d, s%d" % (SP + 1, kmask + 1))
    e("s_mov_b32 s%d, 16" % (SP + 2))
    e("s_lshr_b32 s%d, s%d, 4" % (s_tmp2, s_pair))
    e("s_lshl_b32 s%d, s%d, 1" % (s_tmp2, s_tmp2))
    e("v_mov_b32 v%d, s%d" % (v_al, s_tmp2))
    e("buffer_load_ushort v%d, v%d, s[%d:%d], 0 offen" % (TQ + 8, v_al, SP, SP + 3))
    g.label("L_notree1")
    loadK(0); loadQ(); loadV(0); advance()
    for b in range(1, D):
        loadK(b); loadV(b); advance()
    e("s_mov_b32 s%d, 0x%08x" % (s_c, fbits(CSC)))
    e("s_mov_b32 s%d, 0x%08x" % (s_rc, fbits(1.0 / CSC)))
    e("s_mov_b32 s%d, 0x05040100" % s_sello)
    e("s_mov_b32 s%d, 0x07060302" % s_selhi)
    e("v_mov_b32 v%d, 0xff7fffff" % v_m)
    e("v_mov_b32 v%d, 0xff7fffff" % v_thr)
    e("v_mov_b32 v%d, 0" % v_l)
    for i in range(4):
        e("v_mov_b32 v%d, 0" % (LQ + i))
        e("v_mov_b32 v%d, 0x3f803f80" % (ONES + i))
    for i in range(32):
        e("v_mov_b32 v%d, 0" % (O + i))
    e("s_lshl_b32 s%d, s%d, 12" % (s_tmp, s_pair))
    e("s_add_u32 s%d, s%d, s%d" % (SP, kws, s_tmp))
    e("s_addc_u32 s%d, s%d, 0" % (SP + 1, kws + 1))
    e("s_mov_b32 s%d, 4096" % (SP + 2))
    e("s_mov_b32 s%d, 0x00020000" % (SP + 3))
    if NW > 1:
        e("s_cmp_lg_u32 s%d, 0" % s_wave)
        e("s_cbranch_scc1 L_noclear")
    e("v_cmp_eq_u32 vcc, 0, v%d" % v_lane)
    e("v_mov_b32 v%d, 0x7ffffff0" % v_t0)
    for i in range(4):
        e("v_mov_b32 v%d, -1" % (T + i))
    e("v_cndmask_b32 v%d, v%d, 0, vcc" % (v_aoff, v_t0))
    e("s_lshl_b32 s%d, s%d, 11" % (s_tmp, s_split))
    e("v_add_u32 v%d, 1024, v%d" % (v_t0, v_aoff))
    e("buffer_store_dwordx4 %s, v%d, s[%d:%d], s%d offen sc0 sc1" % (vr(T, 4), v_voff, SP, SP + 3, s_tmp))
    e("buffer_store_dwordx4 %s, v%d, s[%d:%d], s%d offen sc0 sc1" % (vr(T, 4), v_t0, SP, SP + 3, s_tmp))
    e("s_mov_b32 s%d, s%d" % (SD, kdbg))
    e("s_mov_b32 s%d, s%d" % (SD + 1, kdbg + 1))
    e("s_mov_b32 s%d, 256" % (SD + 2))
    e("s_mov_b32 s%d, 0x00020000" % (SD + 3))
    g.label("L_noclear")
    e("s_cmp_lg_u32 s%d, 0" % s_role)
    e("s_cbranch_scc1 L_notree2")
    e("s_waitcnt vmcnt(%d)" % (16 * D + 4 + (2 if TW == 0 else 0)))
    e("v_lshlrev_b32 v%d, 16, v%d" % (v_t0, TQ))
    e("v_lshlrev_b32 v%d, 16, v%d" % (v_t1, TQ + 2))
    e("v_mul_f32 v%d, v%d, v%d" % (v_t2, v_t0, v_t1))
    e("v_and_b32 v%d, 0xffff0000, v%d" % (v_t0, TQ))
    e("v_and_b32 v%d, 0xffff0000, v%d" % (v_t1, TQ + 2))
    e("v_fma_f32 v%d, v%d, v%d, v%d" % (v_t2, v_t0, v_t1, v_t2))
    e("v_lshlrev_b32 v%d, 16, v%d" % (v_t0, TQ + 1))
    e("v_lshlrev_b32 v%d, 16, v%d" % (v_t1, TQ + 3))
    e("v_fma_f32 v%d, v%d, v%d, v%d" % (v_t2, v_t0, v_t1, v_t2))
    e("v_and_b32 v%d, 0xffff0000, v%d" % (v_t0, TQ + 1))
    e("v_and_b32 v%d, 0xffff0000, v%d" % (v_t1, TQ + 3))
    e("v_fma_f32 v%d, v%d, v%d, v%d" % (v_t2, v_t0, v_t1, v_t2))
    for sh in (8, 4, 2, 1):
        e("s_nop 1")
        e("v_add_f32_dpp v%d, v%d, v%d row_ror:%d row_mask:0xf bank_mask:0xf" % (v_t2, v_t2, v_t2, sh))
    e("v_mov_b32 v%d, v%d" % (v_t1, v_t2))
    e("s_nop 1")
    e("v_permlane16_swap_b32 v%d, v%d" % (v_t2, v_t1))
    e("v_add_f32 v%d, v%d, v%d" % (v_t2, v_t2, v_t1))
    e("v_lshlrev_b32 v%d, 16, v%d" % (v_t1, TQ + 8))
    e("v_sub_f32 v%d, 1.0, v%d" % (v_t1, v_t1))
    e("v_mul_f32 v%d, 0xceabfb8f, v%d" % (v_t1, v_t1))
    e("v_fma_f32 v%d, v%d, s%d, v%d" % (v_t0, v_t2, s_c, v_t1))
    e("v_mov_b32 v%d, 1.0" % v_t1)
    for r in range(4):
        e("v_lshlrev_b32 v%d, 16, v%d" % (TQ + 4 + r, TQ + 4 + r))
    e("v_lshrrev_b32 v%d, 5, v%d" % (v_t2, v_lane))
    e("v_lshlrev_b32 v%d, 3, v%d" % (v_t2, v_t2))
    e("ds_write_b128 v%d, %s offset:%d" % (v_voff, vr(TQ + 4, 4), 1024 * NW))
    e("ds_write_b64 v%d, %s offset:%d" % (v_t2, vr(v_t0, 2), LML + 16 * NW))
    e("s_waitcnt lgkmcnt(0)")
    g.label("L_notree2")
    if STAMPS:
        e("s_waitcnt vmcnt(%d)" % (16 * D - 8))
        e("s_memrealtime s[50:51]")

    rare_blocks = []
    def body(b, pref, wk, wv, tag):
        e("s_waitcnt vmcnt(%d)" % wk)
        for j in range(4):
            for t in range(2):
                c = "0" if j == 0 else vr(S + 4 * t, 4)
                e("v_mfma_f32_16x16x32_bf16 %s, %s, %s, %s" % (vr(S + 4 * t, 4), kr(KB + 32 * b + 16 * t + 4 * j, 4), vr(Q + 4 * j, 4), c))
        kl = listK(b) if pref else []
        if pref and not SPREAD:
            loadK(b)
            kl = []
        elif pref and SPREAD:
            e(kl.pop(0)); e(kl.pop(0))
            e("s_nop 5")
        else:
            e("s_nop 7")
        e("v_max3_f32 v%d, v%d, v%d, v%d" % (v_t0, S, S + 1, S + 2))
        e("v_max3_f32 v%d, v%d, v%d, v%d" % (v_t1, S + 3, S + 4, S + 5))
        e("v_max3_f32 v%d, v%d, v%d, v%d" % (v_t0, v_t0, S + 6, S + 7))
        e("v_max_f32 v%d, v%d, v%d" % (v_t0, v_t0, v_t1))
        e("v_cmp_gt_f32 vcc, v%d, v%d" % (v_t0, v_thr))
        e("s_cbranch_vccnz L_rare_%s" % tag)
        g.label("L_back_%s" % tag)
        rare_blocks.append(tag)
        for i in range(8):
            e("v_fma_f32 v%d, v%d, s%d, -v%d" % (S + i, S + i, s_c, v_m))
            if kl and i % 4 == 3: e(kl.pop(0))
        for i in range(8):
            e("v_exp_f32 v%d, v%d" % (S + i, S + i))
            if kl and i % 2 == 1: e(kl.pop(0))
        for y in range(4):
            e("v_cvt_pk_bf16_f32 v%d, v%d, v%d" % (P + y, S + 2 * y, S + 2 * y + 1))
        while kl: e(kl.pop(0))
        e("s_waitcnt vmcnt(%d)" % wv)
        def perm(i):
            sel = s_selhi if (i & 1) else s_sello
            for y in range(4):
                lo = VB + 32 * b + 4 * (2 * y) + (i >> 1)
                hi = VB + 32 * b + 4 * (2 * y + 1) + (i >> 1)
                e("v_perm_b32 v%d, v%d, v%d, s%d" % (T + 4 * (i % 3) + y, hi, lo, sel))
        def pv(i):
            e("v_mfma_f32_16x16x32_bf16 %s, %s, %s, %s" % (vr(O + 4 * i, 4), vr(T + 4 * (i % 3), 4), vr(P, 4), vr(O + 4 * i, 4)))
        perm(0)
        e("v_mfma_f32_16x16x32_bf16 %s, %s, %s, %s" % (vr(LQ, 4), vr(ONES, 4), vr(P, 4), vr(LQ, 4)))
        for i in range(8):
            if i + 1 < 8:
                perm(i + 1)
            else:
                e("s_nop 1")
            pv(i)
        if pref:
            loadV(b)
            advance()

    NLOOP = (NT - D) // D
    R = (NT - D) % D
    W = 16 * D - 8
    e("s_mov_b32 s%d, %d" % (s_cnt, NLOOP))
    g.label("L_loop")
    for b in range(D):
        body(b, True, W, W, "m%d" % b)
    if TL:
        e("s_memrealtime s[72:73]")
        e("s_waitcnt lgkmcnt(0)")
        e("s_and_b32 m0, s%d, 63" % s_cnt)
        e("s_nop 1")
        e("v_writelane_b32 v%d, s72, m0" % v_tl)
    e("s_sub_u32 s%d, s%d, 1" % (s_cnt, s_cnt))
    e("s_cmp_lg_u32 s%d, 0" % s_cnt)
    e("s_cbranch_scc1 L_loop")
    def arrival():
        if NW > 1:
            e("s_cmp_lg_u32 s%d, 0" % s_wave)
            e("s_cbranch_scc1 L_noarr")
        e("s_and_b32 s%d, s%d, 1" % (s_shift, s_pair))
        e("s_lshl_b32 s%d, s%d, 4" % (s_shift, s_shift))
        e("s_lshl_b32 s%d, 1, s%d" % (s_tmp, s_shift))
        e("v_mov_b32 v%d, s%d" % (v_arr, s_tmp))
        e("s_lshr_b32 s%d, s%d, 1" % (s_tmp, s_pair))
        e("s_lshl_b32 s%d, s%d, 2" % (s_tmp, s_tmp))
        e("v_add_u32 v%d, s%d, v%d" % (v_t0, s_tmp, v_aoff))
        e("buffer_atomic_add v%d, v%d, s[%d:%d], 0 offen sc0" % (v_arr, v_t0, SD, SD + 3))
        g.label("L_noarr")
    q = []
    for b in range(D):
        q += [("K", b), ("V", b)]
    for k in range(R + D):
        if k == R:
            arrival()
        b = k % D
        pref = k < R
        i = q.index(("K", b))
        wk = 8 * (len(q) - 1 - i)
        q = q[i + 1:]
        if pref:
            q.append(("K", b))
        i = q.index(("V", b))
        wv = 8 * (len(q) - 1 - i)
        q = q[i + 1:]
        if pref:
            q.append(("V", b))
        body(b, pref, wk, wv, "e%d" % k)
    if TL:
        e("s_memrealtime s[72:73]")
        e("s_waitcnt lgkmcnt(0)")
        e("v_writelane_b32 v%d, s72, 0" % v_tl)
        e("v_writelane_b32 v%d, s48, 63" % v_tl)
        e("v_writelane_b32 v%d, s50, 62" % v_tl)
        e("s_mul_i32 s72, s2, %d" % NW)
        e("s_add_u32 s72, s72, s%d" % s_wave)
        e("s_lshl_b32 s72, s72, 8")
        e("s_add_u32 s72, s72, 0x20100000")
        e("s_add_u32 s76, s40, s72")
        e("s_addc_u32 s77, s41, 0")
        e("s_mov_b32 s78, 256")
        e("s_mov_b32 s79, 0x00020000")
        e("v_lshlrev_b32 v%d, 2, v%d" % (v_t0, v_lane))
        e("buffer_store_dword v%d, v%d, s[76:79], 0 offen" % (v_tl, v_t0))
    if NW > 1:
        e("s_cmp_lg_u32 s%d, 0" % s_wave)
        e("s_cbranch_scc1 L_lds")
    e("v_readfirstlane_b32 s%d, v%d" % (s_role, v_arr))
    e("s_xor_b32 s%d, s%d, 1" % (s_tmp, s_split))
    e("s_lshl_b32 s%d, s%d, 11" % (s_tmp, s_tmp))
    e("s_lshr_b32 s%d, s%d, s%d" % (s_role, s_role, s_shift))
    e("s_and_b32 s%d, s%d, 1" % (s_role, s_role))
    e("s_cmp_eq_u32 s%d, 0" % s_role)
    e("s_cbranch_scc1 L_lds")
    e("v_lshrrev_b32 v%d, 5, v%d" % (v_t3, v_lane))
    e("v_lshlrev_b32 v%d, 3, v%d" % (v_t3, v_t3))
    e("buffer_load_dwordx4 %s, v%d, s[%d:%d], s%d offen sc0 sc1" % (vr(PO, 4), v_voff, SP, SP + 3, s_tmp))
    e("buffer_load_dwordx2 %s, v%d, s[%d:%d], s%d offen offset:1024 sc0 sc1" % (vr(PML, 2), v_t3, SP, SP + 3, s_tmp))
    g.label("L_lds")
    e("v_and_b32 v%d, 1, v%d" % (v_t0, v_lane))
    e("v_lshrrev_b32 v%d, 4, v%d" % (v_t1, v_lane))
    e("v_lshlrev_b32 v%d, 9, v%d" % (v_t2, v_t0))
    e("v_lshl_add_u32 v%d, v%d, 7, v%d" % (v_t2, v_t1, v_t2))
    e("s_lshl_b32 s%d, s%d, 10" % (s_tmp2, s_wave))
    e("v_add_u32 v%d, s%d, v%d" % (v_t2, s_tmp2, v_t2))
    e("s_lshl_b32 s%d, s%d, 4" % (s_tmp2, s_wave))
    e("s_add_u32 s%d, s%d, %d" % (s_tmp2, s_tmp2, LML))
    e("v_lshlrev_b32 v%d, 3, v%d" % (v_t0, v_t0))
    e("v_add_u32 v%d, s%d, v%d" % (v_t0, s_tmp2, v_t0))
    e("v_mov_b32 v%d, v%d" % (v_l, LQ))
    e("s_mov_b32 exec_lo, 0x00030003")
    e("s_mov_b32 exec_hi, 0x00030003")
    for i in range(8):
        e("ds_write_b128 v%d, %s offset:%d" % (v_t2, vr(O + 4 * i, 4), 16 * i))
    e("ds_write_b64 v%d, %s" % (v_t0, vr(v_m, 2)))
    e("s_mov_b64 exec, -1")
    e("s_waitcnt lgkmcnt(0)")
    if NW > 1:
        e("s_barrier")
        e("s_cmp_lg_u32 s%d, 0" % s_wave)
        e("s_cbranch_scc1 L_end")
    if STAMPS:
        e("s_memrealtime s[52:53]")
    A = XB
    ML = XB + 4 * NP
    if ML & 1: ML += 1
    e("v_lshrrev_b32 v%d, 5, v%d" % (v_t1, v_lane))
    e("v_lshlrev_b32 v%d, 3, v%d" % (v_t1, v_t1))
    for w in range(NP):
        e("ds_read_b64 %s, v%d offset:%d" % (vr(ML + 2 * w, 2), v_t1, LML + 16 * w))
    e("v_lshrrev_b32 v%d, 3, v%d" % (v_t2, v_lane))
    e("v_lshlrev_b32 v%d, 7, v%d" % (v_t2, v_t2))
    e("v_and_b32 v%d, 1, v%d" % (v_t3, v_lane))
    e("v_lshl_add_u32 v%d, v%d, 6, v%d" % (v_t2, v_t3, v_t2))
    e("v_bfe_u32 v%d, v%d, 1, 2" % (v_t3, v_lane))
    e("v_lshl_add_u32 v%d, v%d, 2, v%d" % (v_t2, v_t3, v_t2))
    for w in range(NP):
        for u in range(4):
            e("ds_read_b32 v%d, v%d offset:%d" % (A + 4 * w + u, v_t2, 1024 * w + 16 * u))
    e("s_cmp_eq_u32 s%d, 0" % s_split)
    e("s_waitcnt lgkmcnt(0)")
    e("s_cbranch_scc1 L_has_tree")
    e("v_mov_b32 v%d, 0xff7fffff" % (ML + 2 * NW))
    e("v_mov_b32 v%d, 0" % (ML + 2 * NW + 1))
    for r in range(4):
        e("v_mov_b32 v%d, 0" % (A + 4 * NW + r))
    g.label("L_has_tree")
    e("v_max_f32 v%d, v%d, v%d" % (v_m, ML, ML + 2))
    for w in range(2, NP):
        e("v_max_f32 v%d, v%d, v%d" % (v_m, v_m, ML + 2 * w))
    for w in range(NP):
        e("v_sub_f32 v%d, v%d, v%d" % (ML + 2 * w, ML + 2 * w, v_m))
    for w in range(NP):
        e("v_exp_f32 v%d, v%d" % (ML + 2 * w, ML + 2 * w))
    e("s_nop 0")
    e("v_mul_f32 v%d, v%d, v%d" % (v_l, ML, ML + 1))
    for r in range(4):
        e("v_mul_f32 v%d, v%d, v%d" % (O + r, A + r, ML))
    for w in range(1, NP):
        e("v_fma_f32 v%d, v%d, v%d, v%d" % (v_l, ML + 2 * w, ML + 2 * w + 1, v_l))
        for r in range(4):
            e("v_fma_f32 v%d, v%d, v%d, v%d" % (O + r, A + 4 * w + r, ML + 2 * w, O + r))
    e("s_cmp_lg_u32 s%d, 0" % s_role)
    e("s_cbranch_scc1 L_combine")
    for r in range(4):
        e("v_min_u32 v%d, 0xfffffffe, v%d" % (O + r, O + r))
    e("v_min_u32 v%d, 0xfffffffe, v%d" % (v_m, v_m))
    e("v_min_u32 v%d, 0xfffffffe, v%d" % (v_l, v_l))
    e("s_lshl_b32 s%d, s%d, 11" % (s_tmp, s_split))
    e("buffer_store_dwordx4 %s, v%d, s[%d:%d], s%d offen sc0 sc1" % (vr(O, 4), v_voff, SP, SP + 3, s_tmp))
    e("buffer_store_dwordx2 %s, v%d, s[%d:%d], s%d offen offset:1024 sc0 sc1" % (vr(v_m, 2), v_t1, SP, SP + 3, s_tmp))
    e("s_branch L_fin")
    g.label("L_combine")
    e("s_mov_b32 s%d, 0x100000" % s_cnt)
    e("s_waitcnt vmcnt(0)")
    g.label("L_check")
    e("v_max3_u32 v%d, v%d, v%d, v%d" % (v_t0, PO, PO + 1, PO + 2))
    e("v_max3_u32 v%d, v%d, v%d, v%d" % (v_t0, v_t0, PO + 3, PML))
    e("v_max_u32 v%d, v%d, v%d" % (v_t0, v_t0, PML + 1))
    e("v_cmp_eq_u32 vcc, -1, v%d" % v_t0)
    e("s_cbranch_vccz L_valid")
    e("s_sub_u32 s%d, s%d, 1" % (s_cnt, s_cnt))
    e("s_cbranch_scc1 L_valid")
    e("s_xor_b32 s%d, s%d, 1" % (s_tmp, s_split))
    e("s_lshl_b32 s%d, s%d, 11" % (s_tmp, s_tmp))
    e("buffer_load_dwordx4 %s, v%d, s[%d:%d], s%d offen sc0 sc1" % (vr(PO, 4), v_voff, SP, SP + 3, s_tmp))
    e("buffer_load_dwordx2 %s, v%d, s[%d:%d], s%d offen offset:1024 sc0 sc1" % (vr(PML, 2), v_t1, SP, SP + 3, s_tmp))
    e("s_waitcnt vmcnt(0)")
    e("s_branch L_check")
    g.label("L_valid")
    e("v_max_f32 v%d, v%d, v%d" % (v_t0, v_m, PML))
    e("v_sub_f32 v%d, v%d, v%d" % (v_t2, v_m, v_t0))
    e("v_sub_f32 v%d, v%d, v%d" % (v_t3, PML, v_t0))
    e("v_exp_f32 v%d, v%d" % (v_t2, v_t2))
    e("v_exp_f32 v%d, v%d" % (v_t3, v_t3))
    e("s_lshl_b32 s%d, s%d, 9" % (s_tmp, s_pair))
    e("s_add_u32 s%d, s%d, s%d" % (SX, kout, s_tmp))
    e("s_addc_u32 s%d, s%d, 0" % (SX + 1, kout + 1))
    e("v_mul_f32 v%d, v%d, v%d" % (v_l, v_l, v_t2))
    e("v_fma_f32 v%d, v%d, v%d, v%d" % (v_l, PML + 1, v_t3, v_l))
    e("v_rcp_f32 v%d, v%d" % (v_l, v_l))
    for r in range(4):
        e("v_mul_f32 v%d, v%d, v%d" % (O + r, O + r, v_t2))
    for r in range(4):
        e("v_fma_f32 v%d, v%d, v%d, v%d" % (O + r, PO + r, v_t3, O + r))
    e("v_lshlrev_b32 v%d, 3, v%d" % (v_t0, v_lane))
    for r in range(4):
        e("v_mul_f32 v%d, v%d, v%d" % (O + r, O + r, v_l))
    e("v_cvt_pk_bf16_f32 v%d, v%d, v%d" % (P, O, O + 1))
    e("v_cvt_pk_bf16_f32 v%d, v%d, v%d" % (P + 1, O + 2, O + 3))
    e("buffer_store_dwordx2 %s, v%d, s[%d:%d], 0 offen %s" % (vr(P, 2), v_t0, SX, SX + 3, OFLAGS))
    g.label("L_fin")
    if STAMPS:
        e("s_waitcnt vmcnt(0)")
        e("s_memrealtime s[54:55]")
        e("s_getreg_b32 s68, hwreg(HW_REG_XCC_ID)")
        e("s_getreg_b32 s69, hwreg(HW_REG_HW_ID)")
        e("s_lshl_b32 s44, s2, 6")
        e("s_add_u32 s44, s44, 0x20000000")
        e("s_add_u32 s16, s40, s44")
        e("s_addc_u32 s17, s41, 0")
        e("s_mov_b32 s18, 64")
        e("s_mov_b32 s19, 0x00020000")
        e("s_waitcnt lgkmcnt(0)")
        for i in range(8):
            e("v_mov_b32 v%d, s%d" % (32 + i, 48 + i))
        e("v_mov_b32 v40, s68")
        e("v_mov_b32 v41, s69")
        e("v_mov_b32 v10, 0")
        e("s_mov_b64 exec, 1")
        e("buffer_store_dwordx4 v[32:35], v10, s[16:19], 0 offen")
        e("buffer_store_dwordx4 v[36:39], v10, s[16:19], 0 offen offset:16")
        e("buffer_store_dwordx2 v[40:41], v10, s[16:19], 0 offen offset:32")
    g.label("L_end")
    e("s_endpgm")
    for tag in rare_blocks:
        g.label("L_rare_%s" % tag)
        e("v_mov_b32 v%d, v%d" % (v_t1, v_t0))
        e("s_nop 1")
        e("v_permlane32_swap_b32 v%d, v%d" % (v_t0, v_t1))
        e("v_max_f32 v%d, v%d, v%d" % (v_t0, v_t0, v_t1))
        e("v_mov_b32 v%d, v%d" % (v_t1, v_t0))
        e("s_nop 1")
        e("v_permlane16_swap_b32 v%d, v%d" % (v_t0, v_t1))
        e("v_max_f32 v%d, v%d, v%d" % (v_t0, v_t0, v_t1))
        e("v_mul_f32 v%d, s%d, v%d" % (v_t0, s_c, v_t0))
        e("v_max_f32 v%d, v%d, v%d" % (v_mn, v_m, v_t0))
        e("v_sub_f32 v%d, v%d, v%d" % (v_t1, v_m, v_mn))
        e("v_exp_f32 v%d, v%d" % (v_al, v_t1))
        e("v_mov_b32 v%d, v%d" % (v_m, v_mn))
        e("v_add_f32 v%d, 0x%08x, v%d" % (v_thr, fbits(THR), v_mn))
        e("v_mul_f32 v%d, s%d, v%d" % (v_thr, s_rc, v_thr))
        for i in range(4):
            e("v_mul_f32 v%d, v%d, v%d" % (LQ + i, LQ + i, v_al))
        for i in range(32):
            e("v_mul_f32 v%d, v%d, v%d" % (O + i, O + i, v_al))
        e("s_branch L_back_%s" % tag)
    txt = g.text()

    lds = max(LDS, LML + 16 * NP)
    nv = (VEND + 7) // 8 * 8
    acc_off = nv
    if KACC: nv = nv + 32 * D
    out = HEADER
    out += "; @launch grid=(%d,1,1) block=(%d,1,1) lds=%d\n" % (NWG, 64 * NW, lds)
    out += '.amdgcn_target "amdgcn-amd-amdhsa--gfx950"\n.text\n.globl %s_kernel\n.p2align 8\n.type %s_kernel,@function\n%s_kernel:\n' % (NAME, NAME, NAME)
    out += DOC
    out += txt
    out += """.section .rodata,"a"
.p2align 6
.amdhsa_kernel %s_kernel
  .amdhsa_next_free_vgpr %d
  .amdhsa_next_free_sgpr 80
  .amdhsa_accum_offset %d
  .amdhsa_group_segment_fixed_size 0
  .amdhsa_kernarg_size 72
  .amdhsa_user_sgpr_count 2
  .amdhsa_user_sgpr_kernarg_segment_ptr 1
  .amdhsa_system_sgpr_workgroup_id_x 1
.end_amdhsa_kernel
""" % (NAME, nv, acc_off)
    return out

if __name__ == "__main__":
    ap = argparse.ArgumentParser()
    ap.add_argument("-o", required=True)
    ap.add_argument("--nw", type=int, default=1)
    ap.add_argument("--depth", type=int, default=3)
    ap.add_argument("--il", type=int, default=8)
    ap.add_argument("--map", default="splitmajor")
    ap.add_argument("--kflags", default="nt")
    ap.add_argument("--vflags", default="nt")
    ap.add_argument("--stamps", action="store_true")
    ap.add_argument("--nokacc", action="store_true")
    ap.add_argument("--oflags", default="")
    ap.add_argument("--lds", type=int, default=90000)
    ap.add_argument("--thr", type=float, default=8.0)
    ap.add_argument("--tl", action="store_true")
    ap.add_argument("--onestream", action="store_true")
    ap.add_argument("--vshift", type=int, default=0)
    ap.add_argument("--l2test", action="store_true")
    ap.add_argument("--spread", type=int, default=0)
    a = ap.parse_args()
    open(a.o, "w").write(gen(NW=a.nw, D=a.depth, IL=a.il, MAP=a.map, KFLAGS=a.kflags, VFLAGS=a.vflags, STAMPS=a.stamps, KACC=not a.nokacc, OFLAGS=a.oflags, LDS=a.lds, THR=a.thr, TL=a.tl, SPREAD=a.spread, L2TEST=a.l2test, ONESTREAM=a.onestream, VSHIFT=a.vshift))
```

```python
import sys, argparse
from gen1 import NAME, HEADER, Gen, vr, sr

DOC = """    ; ---------------------------------------------------------------------------------------------
    ; ---------------------------------------------------------------------------------------------
"""

def gen(NW=1, D=3, IL=8, MAP="splitmajor", KFLAGS="nt", VFLAGS="nt", STAMPS=False, LDS=90000, KACC=True, OFLAGS="", THR=8.0, LMFMA=True, LAZY=True, TL=False, SPREAD=0, L2TEST=False, ONESTREAM=False, VSHIFT=0, SEG=0, KCONTIG=False, VMAP=0):
    import struct
    def fbits(x): return struct.unpack("<I", struct.pack("<f", x))[0]
    g = Gen()
    e = g.e
    NSPLIT = 2
    NWG = 256
    NT = 8192 // NSPLIT // 32 // NW
    TSTRIDE = NW * 8192
    JUMP = (NSPLIT - 1) * IL * NW * 8192
    TW = 1 if NW > 1 else 0
    CSC = 128 ** -0.5 * 1.4426950408889634
    v_koff = 1
    v_voff = 2
    v_lane = 3
    v_m = 4
    v_l = 5
    v_t0 = 6
    v_t1 = 7
    v_al = 8
    v_mn = 9
    v_t2 = 10
    v_t3 = 11
    v_arr = 12
    v_aoff = 13
    PO = 14
    PML = 18
    v_thr = 20
    v_tl = 21
    v_vld = 22
    LQ = 24
    ONES = 28
    Q = 32
    S = Q + 16
    P = S + 8
    T = P + 4
    O = T + 12
    if KACC:
        VB = O + 32
        KB = 0
        VEND = VB + 32 * D
        XB = VB
    else:
        KB = O + 32
        VB = KB + 32 * D
        VEND = VB + 32 * D
        XB = KB
    def kr(base, n):
        return ("a[%d:%d]" if KACC else "v[%d:%d]") % (base, base + n - 1)
    s_pair = 3
    s_split = 4
    s_wave = 5
    s_c = 6
    s_sello = 7
    SK = 8
    SV = 12
    SX = 16
    s_ko = 20
    s_ko2 = 21
    s_cnt = 22
    s_selhi = 23
    s_ptr = 24
    s_tmp = 44
    s_tmp2 = 45
    s_ilc = 46
    s_ilj = 47
    SP = 56
    s_role = 60
    s_shift = 61
    s_jA = 62
    s_jB = 63
    SD = 64
    s_rc = 70
    kq, kk, kv, kkt, kvt, kmask, kout, kdbg, kws = [s_ptr + 2 * i for i in range(9)]
    NP = NW + 1
    LML = NP * 1024

    e("s_cmp_ge_u32 s2, %d" % NWG)
    e("s_cbranch_scc1 L_end")
    e("s_load_dwordx16 s[24:39], s[0:1], 0")
    e("s_load_dwordx2 s[40:41], s[0:1], 64")
    if STAMPS:
        e("s_memrealtime s[48:49]")
    if MAP == "pairmajor":
        e("s_lshr_b32 s%d, s2, 1" % s_pair)
        e("s_and_b32 s%d, s2, 1" % s_split)
    elif MAP == "adj":
        e("s_lshr_b32 s%d, s2, 4" % s_pair)
        e("s_lshl_b32 s%d, s%d, 3" % (s_pair, s_pair))
        e("s_and_b32 s%d, s2, 7" % s_split)
        e("s_or_b32 s%d, s%d, s%d" % (s_pair, s_pair, s_split))
        e("s_bfe_u32 s%d, s2, 0x10003" % s_split)
    elif MAP == "adj64":
        e("s_lshr_b32 s%d, s2, 7" % s_pair)
        e("s_lshl_b32 s%d, s%d, 6" % (s_pair, s_pair))
        e("s_and_b32 s%d, s2, 63" % s_split)
        e("s_or_b32 s%d, s%d, s%d" % (s_pair, s_pair, s_split))
        e("s_bfe_u32 s%d, s2, 0x10006" % s_split)
    else:
        e("s_and_b32 s%d, s2, 127" % s_pair)
        e("s_lshr_b32 s%d, s2, 7" % s_split)
    if NW > 1:
        e("v_lshrrev_b32 v%d, 6, v0" % v_t0)
        e("v_and_b32 v%d, 63, v0" % v_lane)
        e("v_readfirstlane_b32 s%d, v%d" % (s_wave, v_t0))
    else:
        e("v_mov_b32 v%d, v0" % v_lane)
        e("s_mov_b32 s%d, 0" % s_wave)
    if SEG:
        assert NW == 1
        e("v_and_b32 v%d, 1, v%d" % (v_t0, v_lane))
        e("v_lshlrev_b32 v%d, 10, v%d" % (v_t0, v_t0))
        e("v_bfe_u32 v%d, v%d, 1, 1" % (v_t1, v_lane))
        e("v_lshl_add_u32 v%d, v%d, %d, v%d" % (v_t0, v_t1, SEG.bit_length() - 1, v_t0))
    elif VMAP == 1:
        e("v_and_b32 v%d, 3, v%d" % (v_t0, v_lane))
        e("v_lshlrev_b32 v%d, 8, v%d" % (v_t0, v_t0))
    else:
        e("v_and_b32 v%d, 3, v%d" % (v_t0, v_lane))
        e("v_lshlrev_b32 v%d, 10, v%d" % (v_t0, v_t0))
    e("v_bfe_u32 v%d, v%d, 2, 2" % (v_t1, v_lane))
    e("v_lshl_add_u32 v%d, v%d, %d, v%d" % (v_t0, v_t1, 11 if VMAP == 1 else 8, v_t0))
    e("v_lshrrev_b32 v%d, 4, v%d" % (v_t2, v_lane))
    e("v_lshl_add_u32 v%d, v%d, 4, v%d" % (v_koff, v_t2, v_t0))
    e("v_lshlrev_b32 v%d, 4, v%d" % (v_voff, v_lane))
    if VMAP == 1:
        e("v_and_b32 v%d, 15, v%d" % (v_vld, v_lane))
        e("v_lshlrev_b32 v%d, 4, v%d" % (v_vld, v_vld))
        e("v_lshl_add_u32 v%d, v%d, 11, v%d" % (v_vld, v_t2, v_vld))
    e("v_and_b32 v%d, 1, v%d" % (v_t1, v_lane))
    e("v_lshlrev_b32 v%d, 8, v%d" % (v_t1, v_t1))
    e("v_lshl_add_u32 v%d, v%d, 4, v%d" % (v_t3, v_t2, v_t1))
    e("s_lshl_b32 s%d, s%d, 21" % (s_tmp, s_pair))
    if SEG:
        IL = SEG // 2048
        TSTRIDE = 2048
        JUMP = 8 * SEG - SEG
        e("s_mul_i32 s%d, s%d, %d" % (s_tmp2, s_split, 4 * SEG))
    else:
        e("s_mul_i32 s%d, s%d, %d" % (s_tmp2, s_split, IL * NW * 8192))
    e("s_add_u32 s%d, s%d, s%d" % (s_tmp, s_tmp, s_tmp2))
    e("s_lshl_b32 s%d, s%d, 13" % (s_ko, s_wave))
    s_ko1, s_ko3 = 74, 75
    def kos():
        if SEG:
            e("s_add_u32 s%d, s%d, %d" % (s_ko1, s_ko, SEG))
            e("s_add_u32 s%d, s%d, %d" % (s_ko2, s_ko, 2 * SEG))
            e("s_add_u32 s%d, s%d, %d" % (s_ko3, s_ko, 3 * SEG))
        else:
            e("s_add_u32 s%d, s%d, %d" % (s_ko2, s_ko, 1024 if VMAP == 1 else 4096))
    kos()
    e("s_mov_b32 s%d, 0" % s_ilc)
    e("s_mov_b32 s%d, %d" % (s_jA, TSTRIDE + JUMP))
    e("s_mov_b32 s%d, %d" % (s_jB, TSTRIDE))
    e("s_lshl_b32 s%d, s%d, 9" % (s_tmp2, s_pair))
    e("s_mov_b32 s%d, 0x00200000" % (SK + 2))
    e("s_mov_b32 s%d, 0x00020000" % (SK + 3))
    e("s_mov_b32 s%d, 0x00200000" % (SV + 2))
    e("s_mov_b32 s%d, 0x00020000" % (SV + 3))
    e("s_mov_b32 s%d, 512" % (SX + 2))
    e("s_mov_b32 s%d, 0x00020000" % (SX + 3))
    e("s_xor_b32 s%d, s%d, %d" % (s_role, s_wave, TW))
    e("s_or_b32 s%d, s%d, s%d" % (s_role, s_role, s_split))
    e("v_and_b32 v%d, 31, v%d" % (v_al, v_lane))
    e("v_lshlrev_b32 v%d, 3, v%d" % (v_al, v_al))
    e("v_lshrrev_b32 v%d, 5, v%d" % (v_mn, v_lane))
    e("v_lshl_add_u32 v%d, v%d, 8, v%d" % (v_arr, v_mn, v_al))
    e("v_bfe_u32 v%d, v%d, 3, 2" % (v_mn, v_lane))
    e("v_lshlrev_b32 v%d, 6, v%d" % (v_mn, v_mn))
    e("v_and_b32 v%d, 7, v%d" % (v_t0, v_lane))
    e("v_lshl_add_u32 v%d, v%d, 1, v%d" % (v_mn, v_t0, v_mn))
    e("s_waitcnt lgkmcnt(0)")
    e("s_add_u32 s%d, s%d, s%d" % (SK, kk, s_tmp))
    e("s_addc_u32 s%d, s%d, 0" % (SK + 1, kk + 1))
    e("s_add_u32 s%d, s%d, s%d" % (SV, kv, s_tmp))
    e("s_addc_u32 s%d, s%d, 0" % (SV + 1, kv + 1))
    e("s_add_u32 s%d, s%d, s%d" % (SX, kq, s_tmp2))
    e("s_addc_u32 s%d, s%d, 0" % (SX + 1, kq + 1))
    if ONESTREAM:
        e("s_cmp_eq_u32 s%d, 0" % s_split)
        e("s_cselect_b32 s%d, s%d, s%d" % (SK, kk, kv))
        e("s_cselect_b32 s%d, s%d, s%d" % (SK + 1, kk + 1, kv + 1))
        e("s_lshl_b32 s%d, s%d, 21" % (s_tmp, s_pair))
        e("s_add_u32 s%d, s%d, s%d" % (SK, SK, s_tmp))
        e("s_addc_u32 s%d, s%d, 0" % (SK + 1, SK + 1))
        e("s_add_u32 s%d, s%d, 8192" % (SV, SK))
        e("s_addc_u32 s%d, s%d, 0" % (SV + 1, SK + 1))
        e("s_mov_b32 s%d, 16384" % s_jA)
        e("s_mov_b32 s%d, 16384" % s_jB)
    if VSHIFT:
        e("s_add_u32 s%d, s%d, %d" % (SV, SV, VSHIFT))
        e("s_addc_u32 s%d, s%d, 0" % (SV + 1, SV + 1))
        e("s_sub_u32 s%d, s%d, %d" % (SV + 2, SV + 2, VSHIFT + 65536))

    def listK(b):
        if KCONTIG:
            return ["buffer_load_dwordx4 %s, v%d, s[%d:%d], s%d offen offset:%d %s" % (
                    kr(KB + 32 * b + 16 * t + 4 * j, 4), v_voff, SK, SK + 3, (s_ko, s_ko2)[t], 1024 * j, KFLAGS)
                for t in range(2) for j in range(4)]
        return ["buffer_load_dwordx4 %s, v%d, s[%d:%d], s%d offen offset:%d %s" % (
                    kr(KB + 32 * b + 16 * t + 4 * j, 4), v_koff, SK, SK + 3, (s_ko, s_ko2)[t], 64 * j, KFLAGS)
                for t in range(2) for j in range(4)]
    def listV(b):
        if VMAP == 1:
            return ["buffer_load_dwordx4 %s, v%d, s[%d:%d], s%d offen offset:%d %s" % (
                vr(VB + 32 * b + 4 * x, 4), v_vld, SV, SV + 3, s_ko, 256 * x, VFLAGS) for x in range(8)]
        if SEG:
            return ["buffer_load_dwordx4 %s, v%d, s[%d:%d], s%d offen offset:%d %s" % (
                vr(VB + 32 * b + 4 * x, 4), v_voff, SV, SV + 3, (s_ko, s_ko1, s_ko2, s_ko3)[x >> 1], 1024 * (x & 1), VFLAGS) for x in range(8)]
        return ["buffer_load_dwordx4 %s, v%d, s[%d:%d], s%d offen offset:%d %s" % (
                vr(VB + 32 * b + 4 * x, 4), v_voff, SV, SV + 3, (s_ko, s_ko2)[x >> 2], 1024 * (x & 3), VFLAGS) for x in range(8)]
    def loadK(b):
        for x in listK(b): e(x)
    def loadV(b):
        for x in listV(b): e(x)
    def loadQ():
        for j in range(4):
            e("buffer_load_dwordx4 %s, v%d, s[%d:%d], 0 offen offset:%d" % (vr(Q + 4 * j, 4), v_t3, SX, SX + 3, 64 * j))
    def advance():
        e("s_add_u32 s%d, s%d, 1" % (s_ilc, s_ilc))
        e("s_and_b32 s%d, s%d, %d" % (s_ilj, s_ilc, IL - 1))
        e("s_cmp_eq_u32 s%d, 0" % s_ilj)
        e("s_cselect_b32 s%d, s%d, s%d" % (s_ilj, s_jA, s_jB))
        e("s_add_u32 s%d, s%d, s%d" % (s_ko, s_ko, s_ilj))
        if L2TEST:
            e("s_and_b32 s%d, s%d, 0xffff" % (s_ko, s_ko))
        kos()

    TQ = S
    e("s_cmp_lg_u32 s%d, 0" % s_role)
    e("s_cbranch_scc1 L_notree1")
    e("buffer_load_dwordx2 %s, v%d, s[%d:%d], 0 offen" % (vr(TQ, 2), v_arr, SX, SX + 3))
    e("s_lshl_b32 s%d, s%d, 8" % (s_tmp2, s_pair))
    e("s_add_u32 s%d, s%d, s%d" % (SP, kkt, s_tmp2))
    e("s_addc_u32 s%d, s%d, 0" % (SP + 1, kkt + 1))
    e("s_mov_b32 s%d, 256" % (SP + 2))
    e("s_mov_b32 s%d, 0x00020000" % (SP + 3))
    e("buffer_load_dwordx2 %s, v%d, s[%d:%d], 0 offen" % (vr(TQ + 2, 2), v_al, SP, SP + 3))
    e("s_add_u32 s%d, s%d, s%d" % (SP, kvt, s_tmp2))
    e("s_addc_u32 s%d, s%d, 0" % (SP + 1, kvt + 1))
    for r in range(4):
        e("buffer_load_ushort v%d, v%d, s[%d:%d], 0 offen offset:%d" % (TQ + 4 + r, v_mn, SP, SP + 3, 16 * r))
    e("s_mov_b32 s%d, s%d" % (SP, kmask))
    e("s_mov_b32 s%d, s%d" % (SP + 1, kmask + 1))
    e("s_mov_b32 s%d, 16" % (SP + 2))
    e("s_lshr_b32 s%d, s%d, 4" % (s_tmp2, s_pair))
    e("s_lshl_b32 s%d, s%d, 1" % (s_tmp2, s_tmp2))
    e("v_mov_b32 v%d, s%d" % (v_al, s_tmp2))
    e("buffer_load_ushort v%d, v%d, s[%d:%d], 0 offen" % (TQ + 8, v_al, SP, SP + 3))
    g.label("L_notree1")
    loadK(0); loadQ(); loadV(0); advance()
    for b in range(1, D):
        loadK(b); loadV(b); advance()
    e("s_mov_b32 s%d, 0x%08x" % (s_c, fbits(CSC)))
    e("s_mov_b32 s%d, 0x%08x" % (s_rc, fbits(1.0 / CSC)))
    e("s_mov_b32 s%d, 0x05040100" % s_sello)
    e("s_mov_b32 s%d, 0x07060302" % s_selhi)
    e("v_mov_b32 v%d, 0xff7fffff" % v_m)
    e("v_mov_b32 v%d, 0xff7fffff" % v_thr)
    e("v_mov_b32 v%d, 0" % v_l)
    for i in range(4):
        e("v_mov_b32 v%d, 0" % (LQ + i))
        e("v_mov_b32 v%d, 0x3f803f80" % (ONES + i))
    for i in range(32):
        e("v_mov_b32 v%d, 0" % (O + i))
    e("s_lshl_b32 s%d, s%d, 12" % (s_tmp, s_pair))
    e("s_add_u32 s%d, s%d, s%d" % (SP, kws, s_tmp))
    e("s_addc_u32 s%d, s%d, 0" % (SP + 1, kws + 1))
    e("s_mov_b32 s%d, 4096" % (SP + 2))
    e("s_mov_b32 s%d, 0x00020000" % (SP + 3))
    if NW > 1:
        e("s_cmp_lg_u32 s%d, 0" % s_wave)
        e("s_cbranch_scc1 L_noclear")
    e("v_cmp_eq_u32 vcc, 0, v%d" % v_lane)
    e("v_mov_b32 v%d, 0x7ffffff0" % v_t0)
    for i in range(4):
        e("v_mov_b32 v%d, -1" % (T + i))
    e("v_cndmask_b32 v%d, v%d, 0, vcc" % (v_aoff, v_t0))
    e("s_lshl_b32 s%d, s%d, 11" % (s_tmp, s_split))
    e("v_add_u32 v%d, 1024, v%d" % (v_t0, v_aoff))
    e("buffer_store_dwordx4 %s, v%d, s[%d:%d], s%d offen sc0 sc1" % (vr(T, 4), v_voff, SP, SP + 3, s_tmp))
    e("buffer_store_dwordx4 %s, v%d, s[%d:%d], s%d offen sc0 sc1" % (vr(T, 4), v_t0, SP, SP + 3, s_tmp))
    e("s_mov_b32 s%d, s%d" % (SD, kdbg))
    e("s_mov_b32 s%d, s%d" % (SD + 1, kdbg + 1))
    e("s_mov_b32 s%d, 256" % (SD + 2))
    e("s_mov_b32 s%d, 0x00020000" % (SD + 3))
    g.label("L_noclear")
    e("s_cmp_lg_u32 s%d, 0" % s_role)
    e("s_cbranch_scc1 L_notree2")
    e("s_waitcnt vmcnt(%d)" % (16 * D + 4 + (2 if TW == 0 else 0)))
    e("v_lshlrev_b32 v%d, 16, v%d" % (v_t0, TQ))
    e("v_lshlrev_b32 v%d, 16, v%d" % (v_t1, TQ + 2))
    e("v_mul_f32 v%d, v%d, v%d" % (v_t2, v_t0, v_t1))
    e("v_and_b32 v%d, 0xffff0000, v%d" % (v_t0, TQ))
    e("v_and_b32 v%d, 0xffff0000, v%d" % (v_t1, TQ + 2))
    e("v_fma_f32 v%d, v%d, v%d, v%d" % (v_t2, v_t0, v_t1, v_t2))
    e("v_lshlrev_b32 v%d, 16, v%d" % (v_t0, TQ + 1))
    e("v_lshlrev_b32 v%d, 16, v%d" % (v_t1, TQ + 3))
    e("v_fma_f32 v%d, v%d, v%d, v%d" % (v_t2, v_t0, v_t1, v_t2))
    e("v_and_b32 v%d, 0xffff0000, v%d" % (v_t0, TQ + 1))
    e("v_and_b32 v%d, 0xffff0000, v%d" % (v_t1, TQ + 3))
    e("v_fma_f32 v%d, v%d, v%d, v%d" % (v_t2, v_t0, v_t1, v_t2))
    for sh in (8, 4, 2, 1):
        e("s_nop 1")
        e("v_add_f32_dpp v%d, v%d, v%d row_ror:%d row_mask:0xf bank_mask:0xf" % (v_t2, v_t2, v_t2, sh))
    e("v_mov_b32 v%d, v%d" % (v_t1, v_t2))
    e("s_nop 1")
    e("v_permlane16_swap_b32 v%d, v%d" % (v_t2, v_t1))
    e("v_add_f32 v%d, v%d, v%d" % (v_t2, v_t2, v_t1))
    e("v_lshlrev_b32 v%d, 16, v%d" % (v_t1, TQ + 8))
    e("v_sub_f32 v%d, 1.0, v%d" % (v_t1, v_t1))
    e("v_mul_f32 v%d, 0xceabfb8f, v%d" % (v_t1, v_t1))
    e("v_fma_f32 v%d, v%d, s%d, v%d" % (v_t0, v_t2, s_c, v_t1))
    e("v_mov_b32 v%d, 1.0" % v_t1)
    for r in range(4):
        e("v_lshlrev_b32 v%d, 16, v%d" % (TQ + 4 + r, TQ + 4 + r))
    e("v_lshrrev_b32 v%d, 5, v%d" % (v_t2, v_lane))
    e("v_lshlrev_b32 v%d, 3, v%d" % (v_t2, v_t2))
    e("ds_write_b128 v%d, %s offset:%d" % (v_voff, vr(TQ + 4, 4), 1024 * NW))
    e("ds_write_b64 v%d, %s offset:%d" % (v_t2, vr(v_t0, 2), LML + 16 * NW))
    e("s_waitcnt lgkmcnt(0)")
    g.label("L_notree2")
    if STAMPS:
        e("s_waitcnt vmcnt(%d)" % (16 * D - 8))
        e("s_memrealtime s[50:51]")

    rare_blocks = []
    def body(b, pref, wk, wv, tag):
        e("s_waitcnt vmcnt(%d)" % wk)
        for j in range(4):
            for t in range(2):
                c = "0" if j == 0 else vr(S + 4 * t, 4)
                e("v_mfma_f32_16x16x32_bf16 %s, %s, %s, %s" % (vr(S + 4 * t, 4), kr(KB + 32 * b + 16 * t + 4 * j, 4), vr(Q + 4 * j, 4), c))
        kl = listK(b) if pref else []
        if pref and not SPREAD:
            loadK(b)
            kl = []
        elif pref and SPREAD == 2:
            e("s_nop 7")
        elif pref and SPREAD:
            e(kl.pop(0)); e(kl.pop(0))
            e("s_nop 5")
        else:
            e("s_nop 7")
        e("v_max3_f32 v%d, v%d, v%d, v%d" % (v_t0, S, S + 1, S + 2))
        e("v_max3_f32 v%d, v%d, v%d, v%d" % (v_t1, S + 3, S + 4, S + 5))
        e("v_max3_f32 v%d, v%d, v%d, v%d" % (v_t0, v_t0, S + 6, S + 7))
        e("v_max_f32 v%d, v%d, v%d" % (v_t0, v_t0, v_t1))
        e("v_cmp_gt_f32 vcc, v%d, v%d" % (v_t0, v_thr))
        e("s_cbranch_vccnz L_rare_%s" % tag)
        g.label("L_back_%s" % tag)
        rare_blocks.append(tag)
        for i in range(8):
            e("v_fma_f32 v%d, v%d, s%d, -v%d" % (S + i, S + i, s_c, v_m))
            if SPREAD == 1 and kl and i % 4 == 3: e(kl.pop(0))
        for i in range(8):
            e("v_exp_f32 v%d, v%d" % (S + i, S + i))
            if SPREAD == 1 and kl and i % 2 == 1: e(kl.pop(0))
        for y in range(4):
            e("v_cvt_pk_bf16_f32 v%d, v%d, v%d" % (P + y, S + 2 * y, S + 2 * y + 1))
        while SPREAD != 2 and kl: e(kl.pop(0))
        e("s_waitcnt vmcnt(%d)" % wv)
        def perm(i):
            sel = s_selhi if (i & 1) else s_sello
            for y in range(4):
                lo = VB + 32 * b + 4 * (2 * y) + (i >> 1)
                hi = VB + 32 * b + 4 * (2 * y + 1) + (i >> 1)
                e("v_perm_b32 v%d, v%d, v%d, s%d" % (T + 4 * (i % 3) + y, hi, lo, sel))
        def pv(i):
            e("v_mfma_f32_16x16x32_bf16 %s, %s, %s, %s" % (vr(O + 4 * i, 4), vr(T + 4 * (i % 3), 4), vr(P, 4), vr(O + 4 * i, 4)))
        perm(0)
        e("v_mfma_f32_16x16x32_bf16 %s, %s, %s, %s" % (vr(LQ, 4), vr(ONES, 4), vr(P, 4), vr(LQ, 4)))
        for i in range(8):
            if i + 1 < 8:
                perm(i + 1)
            else:
                e("s_nop 1")
            pv(i)
            if kl: e(kl.pop(0))
        if pref:
            loadV(b)
            advance()

    NLOOP = (NT - D) // D
    R = (NT - D) % D
    W = 16 * D - 8
    e("s_mov_b32 s%d, %d" % (s_cnt, NLOOP))
    g.label("L_loop")
    for b in range(D):
        body(b, True, W, (16 * (D - 1) if SPREAD == 2 else W), "m%d" % b)
    if TL:
        e("s_memrealtime s[72:73]")
        e("s_waitcnt lgkmcnt(0)")
        e("s_and_b32 m0, s%d, 63" % s_cnt)
        e("s_nop 1")
        e("v_writelane_b32 v%d, s72, m0" % v_tl)
    e("s_sub_u32 s%d, s%d, 1" % (s_cnt, s_cnt))
    e("s_cmp_lg_u32 s%d, 0" % s_cnt)
    e("s_cbranch_scc1 L_loop")
    def arrival():
        if NW > 1:
            e("s_cmp_lg_u32 s%d, 0" % s_wave)
            e("s_cbranch_scc1 L_noarr")
        e("s_and_b32 s%d, s%d, 1" % (s_shift, s_pair))
        e("s_lshl_b32 s%d, s%d, 4" % (s_shift, s_shift))
        e("s_lshl_b32 s%d, 1, s%d" % (s_tmp, s_shift))
        e("v_mov_b32 v%d, s%d" % (v_arr, s_tmp))
        e("s_lshr_b32 s%d, s%d, 1" % (s_tmp, s_pair))
        e("s_lshl_b32 s%d, s%d, 2" % (s_tmp, s_tmp))
        e("v_add_u32 v%d, s%d, v%d" % (v_t0, s_tmp, v_aoff))
        e("buffer_atomic_add v%d, v%d, s[%d:%d], 0 offen sc0" % (v_arr, v_t0, SD, SD + 3))
        g.label("L_noarr")
    q = []
    for b in range(D):
        q += [("K", b), ("V", b)]
    for k in range(R + D):
        if k == R:
            arrival()
        b = k % D
        pref = k < R
        i = q.index(("K", b))
        wk = 8 * (len(q) - 1 - i)
        q = q[i + 1:]
        if pref and SPREAD != 2:
            q.append(("K", b))
        i = q.index(("V", b))
        wv = 8 * (len(q) - 1 - i)
        q = q[i + 1:]
        if pref and SPREAD == 2:
            q.append(("K", b))
        if pref:
            q.append(("V", b))
        body(b, pref, wk, wv, "e%d" % k)
    if TL:
        e("s_memrealtime s[72:73]")
        e("s_waitcnt lgkmcnt(0)")
        e("v_writelane_b32 v%d, s72, 0" % v_tl)
        e("v_writelane_b32 v%d, s48, 63" % v_tl)
        e("v_writelane_b32 v%d, s50, 62" % v_tl)
        e("s_mul_i32 s72, s2, %d" % NW)
        e("s_add_u32 s72, s72, s%d" % s_wave)
        e("s_lshl_b32 s72, s72, 8")
        e("s_add_u32 s72, s72, 0x20100000")
        e("s_add_u32 s76, s40, s72")
        e("s_addc_u32 s77, s41, 0")
        e("s_mov_b32 s78, 256")
        e("s_mov_b32 s79, 0x00020000")
        e("v_lshlrev_b32 v%d, 2, v%d" % (v_t0, v_lane))
        e("buffer_store_dword v%d, v%d, s[76:79], 0 offen" % (v_tl, v_t0))
    if NW > 1:
        e("s_cmp_lg_u32 s%d, 0" % s_wave)
        e("s_cbranch_scc1 L_lds")
    e("v_readfirstlane_b32 s%d, v%d" % (s_role, v_arr))
    e("s_xor_b32 s%d, s%d, 1" % (s_tmp, s_split))
    e("s_lshl_b32 s%d, s%d, 11" % (s_tmp, s_tmp))
    e("s_lshr_b32 s%d, s%d, s%d" % (s_role, s_role, s_shift))
    e("s_and_b32 s%d, s%d, 1" % (s_role, s_role))
    e("s_cmp_eq_u32 s%d, 0" % s_role)
    e("s_cbranch_scc1 L_lds")
    e("v_lshrrev_b32 v%d, 5, v%d" % (v_t3, v_lane))
    e("v_lshlrev_b32 v%d, 3, v%d" % (v_t3, v_t3))
    e("buffer_load_dwordx4 %s, v%d, s[%d:%d], s%d offen sc0 sc1" % (vr(PO, 4), v_voff, SP, SP + 3, s_tmp))
    e("buffer_load_dwordx2 %s, v%d, s[%d:%d], s%d offen offset:1024 sc0 sc1" % (vr(PML, 2), v_t3, SP, SP + 3, s_tmp))
    g.label("L_lds")
    e("v_and_b32 v%d, 1, v%d" % (v_t0, v_lane))
    e("v_lshrrev_b32 v%d, 4, v%d" % (v_t1, v_lane))
    e("v_lshlrev_b32 v%d, 9, v%d" % (v_t2, v_t0))
    e("v_lshl_add_u32 v%d, v%d, 7, v%d" % (v_t2, v_t1, v_t2))
    e("s_lshl_b32 s%d, s%d, 10" % (s_tmp2, s_wave))
    e("v_add_u32 v%d, s%d, v%d" % (v_t2, s_tmp2, v_t2))
    e("s_lshl_b32 s%d, s%d, 4" % (s_tmp2, s_wave))
    e("s_add_u32 s%d, s%d, %d" % (s_tmp2, s_tmp2, LML))
    e("v_lshlrev_b32 v%d, 3, v%d" % (v_t0, v_t0))
    e("v_add_u32 v%d, s%d, v%d" % (v_t0, s_tmp2, v_t0))
    e("v_mov_b32 v%d, v%d" % (v_l, LQ))
    e("s_mov_b32 exec_lo, 0x00030003")
    e("s_mov_b32 exec_hi, 0x00030003")
    for i in range(8):
        e("ds_write_b128 v%d, %s offset:%d" % (v_t2, vr(O + 4 * i, 4), 16 * i))
    e("ds_write_b64 v%d, %s" % (v_t0, vr(v_m, 2)))
    e("s_mov_b64 exec, -1")
    e("s_waitcnt lgkmcnt(0)")
    if NW > 1:
        e("s_barrier")
        e("s_cmp_lg_u32 s%d, 0" % s_wave)
        e("s_cbranch_scc1 L_end")
    if STAMPS:
        e("s_memrealtime s[52:53]")
    A = XB
    ML = XB + 4 * NP
    if ML & 1: ML += 1
    e("v_lshrrev_b32 v%d, 5, v%d" % (v_t1, v_lane))
    e("v_lshlrev_b32 v%d, 3, v%d" % (v_t1, v_t1))
    for w in range(NP):
        e("ds_read_b64 %s, v%d offset:%d" % (vr(ML + 2 * w, 2), v_t1, LML + 16 * w))
    e("v_lshrrev_b32 v%d, 3, v%d" % (v_t2, v_lane))
    e("v_lshlrev_b32 v%d, 7, v%d" % (v_t2, v_t2))
    e("v_and_b32 v%d, 1, v%d" % (v_t3, v_lane))
    e("v_lshl_add_u32 v%d, v%d, 6, v%d" % (v_t2, v_t3, v_t2))
    e("v_bfe_u32 v%d, v%d, 1, 2" % (v_t3, v_lane))
    e("v_lshl_add_u32 v%d, v%d, 2, v%d" % (v_t2, v_t3, v_t2))
    for w in range(NP):
        for u in range(4):
            e("ds_read_b32 v%d, v%d offset:%d" % (A + 4 * w + u, v_t2, 1024 * w + 16 * u))
    e("s_cmp_eq_u32 s%d, 0" % s_split)
    e("s_waitcnt lgkmcnt(0)")
    e("s_cbranch_scc1 L_has_tree")
    e("v_mov_b32 v%d, 0xff7fffff" % (ML + 2 * NW))
    e("v_mov_b32 v%d, 0" % (ML + 2 * NW + 1))
    for r in range(4):
        e("v_mov_b32 v%d, 0" % (A + 4 * NW + r))
    g.label("L_has_tree")
    e("v_max_f32 v%d, v%d, v%d" % (v_m, ML, ML + 2))
    for w in range(2, NP):
        e("v_max_f32 v%d, v%d, v%d" % (v_m, v_m, ML + 2 * w))
    for w in range(NP):
        e("v_sub_f32 v%d, v%d, v%d" % (ML + 2 * w, ML + 2 * w, v_m))
    for w in range(NP):
        e("v_exp_f32 v%d, v%d" % (ML + 2 * w, ML + 2 * w))
    e("s_nop 0")
    e("v_mul_f32 v%d, v%d, v%d" % (v_l, ML, ML + 1))
    for r in range(4):
        e("v_mul_f32 v%d, v%d, v%d" % (O + r, A + r, ML))
    for w in range(1, NP):
        e("v_fma_f32 v%d, v%d, v%d, v%d" % (v_l, ML + 2 * w, ML + 2 * w + 1, v_l))
        for r in range(4):
            e("v_fma_f32 v%d, v%d, v%d, v%d" % (O + r, A + 4 * w + r, ML + 2 * w, O + r))
    e("s_cmp_lg_u32 s%d, 0" % s_role)
    e("s_cbranch_scc1 L_combine")
    for r in range(4):
        e("v_min_u32 v%d, 0xfffffffe, v%d" % (O + r, O + r))
    e("v_min_u32 v%d, 0xfffffffe, v%d" % (v_m, v_m))
    e("v_min_u32 v%d, 0xfffffffe, v%d" % (v_l, v_l))
    e("s_lshl_b32 s%d, s%d, 11" % (s_tmp, s_split))
    e("buffer_store_dwordx4 %s, v%d, s[%d:%d], s%d offen sc0 sc1" % (vr(O, 4), v_voff, SP, SP + 3, s_tmp))
    e("buffer_store_dwordx2 %s, v%d, s[%d:%d], s%d offen offset:1024 sc0 sc1" % (vr(v_m, 2), v_t1, SP, SP + 3, s_tmp))
    e("s_branch L_fin")
    g.label("L_combine")
    e("s_mov_b32 s%d, 0x100000" % s_cnt)
    e("s_waitcnt vmcnt(0)")
    g.label("L_check")
    e("v_max3_u32 v%d, v%d, v%d, v%d" % (v_t0, PO, PO + 1, PO + 2))
    e("v_max3_u32 v%d, v%d, v%d, v%d" % (v_t0, v_t0, PO + 3, PML))
    e("v_max_u32 v%d, v%d, v%d" % (v_t0, v_t0, PML + 1))
    e("v_cmp_eq_u32 vcc, -1, v%d" % v_t0)
    e("s_cbranch_vccz L_valid")
    e("s_sub_u32 s%d, s%d, 1" % (s_cnt, s_cnt))
    e("s_cbranch_scc1 L_valid")
    e("s_xor_b32 s%d, s%d, 1" % (s_tmp, s_split))
    e("s_lshl_b32 s%d, s%d, 11" % (s_tmp, s_tmp))
    e("buffer_load_dwordx4 %s, v%d, s[%d:%d], s%d offen sc0 sc1" % (vr(PO, 4), v_voff, SP, SP + 3, s_tmp))
    e("buffer_load_dwordx2 %s, v%d, s[%d:%d], s%d offen offset:1024 sc0 sc1" % (vr(PML, 2), v_t1, SP, SP + 3, s_tmp))
    e("s_waitcnt vmcnt(0)")
    e("s_branch L_check")
    g.label("L_valid")
    e("v_max_f32 v%d, v%d, v%d" % (v_t0, v_m, PML))
    e("v_sub_f32 v%d, v%d, v%d" % (v_t2, v_m, v_t0))
    e("v_sub_f32 v%d, v%d, v%d" % (v_t3, PML, v_t0))
    e("v_exp_f32 v%d, v%d" % (v_t2, v_t2))
    e("v_exp_f32 v%d, v%d" % (v_t3, v_t3))
    e("s_lshl_b32 s%d, s%d, 9" % (s_tmp, s_pair))
    e("s_add_u32 s%d, s%d, s%d" % (SX, kout, s_tmp))
    e("s_addc_u32 s%d, s%d, 0" % (SX + 1, kout + 1))
    e("v_mul_f32 v%d, v%d, v%d" % (v_l, v_l, v_t2))
    e("v_fma_f32 v%d, v%d, v%d, v%d" % (v_l, PML + 1, v_t3, v_l))
    e("v_rcp_f32 v%d, v%d" % (v_l, v_l))
    for r in range(4):
        e("v_mul_f32 v%d, v%d, v%d" % (O + r, O + r, v_t2))
    for r in range(4):
        e("v_fma_f32 v%d, v%d, v%d, v%d" % (O + r, PO + r, v_t3, O + r))
    e("v_lshlrev_b32 v%d, 3, v%d" % (v_t0, v_lane))
    for r in range(4):
        e("v_mul_f32 v%d, v%d, v%d" % (O + r, O + r, v_l))
    e("v_cvt_pk_bf16_f32 v%d, v%d, v%d" % (P, O, O + 1))
    e("v_cvt_pk_bf16_f32 v%d, v%d, v%d" % (P + 1, O + 2, O + 3))
    e("buffer_store_dwordx2 %s, v%d, s[%d:%d], 0 offen %s" % (vr(P, 2), v_t0, SX, SX + 3, OFLAGS))
    g.label("L_fin")
    if STAMPS:
        e("s_waitcnt vmcnt(0)")
        e("s_memrealtime s[54:55]")
        e("s_getreg_b32 s68, hwreg(HW_REG_XCC_ID)")
        e("s_getreg_b32 s69, hwreg(HW_REG_HW_ID)")
        e("s_lshl_b32 s44, s2, 6")
        e("s_add_u32 s44, s44, 0x20000000")
        e("s_add_u32 s16, s40, s44")
        e("s_addc_u32 s17, s41, 0")
        e("s_mov_b32 s18, 64")
        e("s_mov_b32 s19, 0x00020000")
        e("s_waitcnt lgkmcnt(0)")
        for i in range(8):
            e("v_mov_b32 v%d, s%d" % (32 + i, 48 + i))
        e("v_mov_b32 v40, s68")
        e("v_mov_b32 v41, s69")
        e("v_mov_b32 v10, 0")
        e("s_mov_b64 exec, 1")
        e("buffer_store_dwordx4 v[32:35], v10, s[16:19], 0 offen")
        e("buffer_store_dwordx4 v[36:39], v10, s[16:19], 0 offen offset:16")
        e("buffer_store_dwordx2 v[40:41], v10, s[16:19], 0 offen offset:32")
    g.label("L_end")
    e("s_endpgm")
    for tag in rare_blocks:
        g.label("L_rare_%s" % tag)
        e("v_mov_b32 v%d, v%d" % (v_t1, v_t0))
        e("s_nop 1")
        e("v_permlane32_swap_b32 v%d, v%d" % (v_t0, v_t1))
        e("v_max_f32 v%d, v%d, v%d" % (v_t0, v_t0, v_t1))
        e("v_mov_b32 v%d, v%d" % (v_t1, v_t0))
        e("s_nop 1")
        e("v_permlane16_swap_b32 v%d, v%d" % (v_t0, v_t1))
        e("v_max_f32 v%d, v%d, v%d" % (v_t0, v_t0, v_t1))
        e("v_mul_f32 v%d, s%d, v%d" % (v_t0, s_c, v_t0))
        e("v_max_f32 v%d, v%d, v%d" % (v_mn, v_m, v_t0))
        e("v_sub_f32 v%d, v%d, v%d" % (v_t1, v_m, v_mn))
        e("v_exp_f32 v%d, v%d" % (v_al, v_t1))
        e("v_mov_b32 v%d, v%d" % (v_m, v_mn))
        e("v_add_f32 v%d, 0x%08x, v%d" % (v_thr, fbits(THR), v_mn))
        e("v_mul_f32 v%d, s%d, v%d" % (v_thr, s_rc, v_thr))
        for i in range(4):
            e("v_mul_f32 v%d, v%d, v%d" % (LQ + i, LQ + i, v_al))
        for i in range(32):
            e("v_mul_f32 v%d, v%d, v%d" % (O + i, O + i, v_al))
        e("s_branch L_back_%s" % tag)
    txt = g.text()

    lds = max(LDS, LML + 16 * NP)
    nv = (VEND + 7) // 8 * 8
    acc_off = nv
    if KACC: nv = nv + 32 * D
    out = HEADER
    out += "; @launch grid=(%d,1,1) block=(%d,1,1) lds=%d\n" % (NWG, 64 * NW, lds)
    out += '.amdgcn_target "amdgcn-amd-amdhsa--gfx950"\n.text\n.globl %s_kernel\n.p2align 8\n.type %s_kernel,@function\n%s_kernel:\n' % (NAME, NAME, NAME)
    out += DOC
    out += txt
    out += """.section .rodata,"a"
.p2align 6
.amdhsa_kernel %s_kernel
  .amdhsa_next_free_vgpr %d
  .amdhsa_next_free_sgpr 80
  .amdhsa_accum_offset %d
  .amdhsa_group_segment_fixed_size 0
  .amdhsa_kernarg_size 72
  .amdhsa_user_sgpr_count 2
  .amdhsa_user_sgpr_kernarg_segment_ptr 1
  .amdhsa_system_sgpr_workgroup_id_x 1
.end_amdhsa_kernel
""" % (NAME, nv, acc_off)
    return out

if __name__ == "__main__":
    ap = argparse.ArgumentParser()
    ap.add_argument("-o", required=True)
    ap.add_argument("--nw", type=int, default=1)
    ap.add_argument("--depth", type=int, default=3)
    ap.add_argument("--il", type=int, default=8)
    ap.add_argument("--map", default="splitmajor")
    ap.add_argument("--kflags", default="nt")
    ap.add_argument("--vflags", default="nt")
    ap.add_argument("--stamps", action="store_true")
    ap.add_argument("--nokacc", action="store_true")
    ap.add_argument("--oflags", default="")
    ap.add_argument("--lds", type=int, default=90000)
    ap.add_argument("--thr", type=float, default=8.0)
    ap.add_argument("--tl", action="store_true")
    ap.add_argument("--vmap", type=int, default=0)
    ap.add_argument("--kcontig", action="store_true")
    ap.add_argument("--seg", type=int, default=0)
    ap.add_argument("--onestream", action="store_true")
    ap.add_argument("--vshift", type=int, default=0)
    ap.add_argument("--l2test", action="store_true")
    ap.add_argument("--spread", type=int, default=0)
    a = ap.parse_args()
    open(a.o, "w").write(gen(NW=a.nw, D=a.depth, IL=a.il, MAP=a.map, KFLAGS=a.kflags, VFLAGS=a.vflags, STAMPS=a.stamps, KACC=not a.nokacc, OFLAGS=a.oflags, LDS=a.lds, THR=a.thr, TL=a.tl, SPREAD=a.spread, L2TEST=a.l2test, ONESTREAM=a.onestream, VSHIFT=a.vshift, SEG=a.seg, KCONTIG=a.kcontig, VMAP=a.vmap))
```
